```python
import torch

def _softmax(x, axis=-1):
    return torch.softmax(x, dim=axis)
def _gelu(x):
    return torch.nn.functional.gelu(x, approximate="tanh")
def _silu(x):
    return torch.nn.functional.silu(x)
def _sigmoid(x):
    return torch.sigmoid(x)
def _layernorm(x, axis=-1, eps=1e-5):
    m = x.mean(dim=axis, keepdim=True)
    v = x.var(dim=axis, keepdim=True, unbiased=False)
    return (x - m) / torch.sqrt(v + eps)
def _scatter_add(tgt, idx, src, axis=0):
    return tgt.clone().index_add_(axis, idx, src)
def _segment_sum(src, seg, n):
    out = torch.zeros((n,) + src.shape[1:], dtype=src.dtype)
    return out.index_add_(0, seg, src)
def _pad(x, pw):
    flat = tuple(v for pair in reversed(pw) for v in pair)
    return torch.nn.functional.pad(x, flat)

kernel_name = 'concat_heads__spectral_gfnet__linear_attn_block__prompt'

def setup_inputs():

    _w = (lambda a: (lambda t: t.to(torch.bfloat16) if t.is_floating_point() else t)(torch.as_tensor(a)))
    def _A_setup():
        B, S, D = 1, 2048, 512
        Df = D // 2 + 1
        return {
            "x": _w((lambda *s: torch.randn(*s, dtype=torch.bfloat16) * 0.05)(B, S, D)),
            "w_r": _w((lambda *s: torch.randn(*s, dtype=torch.bfloat16) * 1.6)(S, Df) * 0.02),
            "w_i": _w((lambda *s: torch.randn(*s, dtype=torch.bfloat16) * 1.6)(S, Df) * 0.02),
        }
    _A_in = _A_setup()

    def _B_setup():
        B, S, D = 1, 2048, 512
        return {
            "x": _w((lambda *s: torch.randn(*s, dtype=torch.bfloat16) * 0.05)(B, S, D)),
            "wqkv": _w((lambda *s: torch.randn(*s, dtype=torch.bfloat16) * 0.4)(D, 3 * D)),
            "wo": _w((lambda *s: torch.randn(*s, dtype=torch.bfloat16) * 0.05)(D, D)),
        }
    _B_in = _B_setup()

    return {
        "A_x": _A_in["x"],
        "A_w_r": _A_in["w_r"],
        "A_w_i": _A_in["w_i"],
        "B_x": _B_in["x"],
        "B_wqkv": _B_in["wqkv"],
        "B_wo": _B_in["wo"],
    }

def reference(A_x, A_w_r, A_w_i, B_x, B_wqkv, B_wo):
    def _A_ref(x, w_r, w_i):
        B, S, D = x.shape
        X = (lambda x, axes=(-2,-1): torch.fft.rfft2(x.float(), dim=axes))(x, axes=(-2, -1))
        W = w_r + 1j * w_i
        X = X * W
        y = (lambda x, s, axes=(-2,-1): torch.fft.irfft2(x, s=s, dim=axes).to(torch.bfloat16))(X, (S, D), axes=(-2, -1))
        return y

    def _B_ref(x, wqkv, wo):
        B, S, D = x.shape
        H = 32; Dh = D // H
        qkv = (lambda x, *d: x.permute(*d))((x @ wqkv).reshape(B, S, 3, H, Dh), 2, 0, 3, 1, 4)
        q, k, v = qkv[0], qkv[1], qkv[2]
        phi = lambda t: torch.where(t > 0, t + 1, torch.exp(t)) + 1e-6
        pq, pk = phi(q), phi(k)
        kv = torch.einsum("bhsd,bhse->bhde", pk, v)
        z = torch.einsum("bhsd->bhd", pk)
        num = torch.einsum("bhqd,bhde->bhqe", pq, kv)
        den = torch.einsum("bhqd,bhd->bhq", pq, z)[..., None] + 1e-6
        o = num / den
        return (lambda x, *d: x.permute(*d))(o, 0, 2, 1, 3).reshape(B, S, D) @ wo

    a = _A_ref(A_x, A_w_r, A_w_i)
    b = _B_ref(B_x, B_wqkv, B_wo)
    return torch.concatenate([a, b], axis=-1)
```

```python
import re

def _regs(tok):
    tok = tok.strip()
    neg = tok.lstrip('-|').rstrip('|')
    m = re.fullmatch(r'([vas])\[(\d+):(\d+)\]', neg)
    if m:
        return [(m.group(1), i) for i in range(int(m.group(2)), int(m.group(3)) + 1)]
    m = re.fullmatch(r'([vas])(\d+)', neg)
    if m:
        return [(m.group(1), int(m.group(2)))]
    if neg == 'vcc':
        return [('s', 'vcc')]
    if neg == 'exec':
        return [('s', 'exec')]
    if neg == 'm0':
        return [('s', 'm0')]
    return []

TRANS = ('v_exp_f32', 'v_log_f32', 'v_rcp_f32', 'v_rsq_f32', 'v_sqrt_f32', 'v_sin_f32', 'v_cos_f32')

class Ins:
    def __init__(self, text):
        self.text = text
        t = text.split(';')[0].strip()
        self.label = t.endswith(':')
        self.directive = t.startswith('.')
        self.op = t.split()[0] if t else ''
        rest = t[len(self.op):].strip()
        rest = re.sub(r'\s+(op_sel|op_sel_hi|neg_lo|neg_hi):\[[^\]]*\]', '', rest)
        ops = [o.strip() for o in rest.split(',')] if rest else []
        if ops:
            last = ops[-1].split()
            self.mods = ' '.join(last[1:])
            ops[-1] = last[0] if last else ''
        else:
            self.mods = ''
        self.ops = ops
        self.defs, self.uses = [], []
        op = self.op
        self.kind = 'other'
        R = [_regs(o) for o in ops]
        if self.label or self.directive or not op:
            self.kind = 'none'
        elif op.startswith('v_mfma'):
            self.kind = 'mfma'
            self.defs = R[0]; self.uses = R[1] + R[2] + R[3]
            self.srcc = R[3]; self.srcab = R[1] + R[2]
            self.passes = 8 if '32x32' in op else 4
        elif op.startswith('v_cmp'):
            self.kind = 'valu'; self.defs = R[0]; self.uses = sum(R[1:], [])
        elif op.startswith('v_readfirstlane') or op.startswith('v_readlane'):
            self.kind = 'valu'; self.defs = R[0]; self.uses = sum(R[1:], [])
        elif op.startswith('v_permlane'):
            self.kind = 'valu'; self.defs = R[0] + R[1]; self.uses = R[0] + R[1]
        elif op.startswith('v_'):
            self.kind = 'valu'; self.defs = R[0]; self.uses = sum(R[1:], [])
            if op.startswith('v_fmac') or op.startswith('v_writelane') or 'dpp' in op or 'row_' in self.mods or 'quad_perm' in self.mods:
                self.uses += R[0]
            if op.startswith('v_cndmask') and len(ops) == 3:
                self.uses += [('s', 'vcc')]
        elif op.startswith('buffer_load') or op.startswith('global_load'):
            self.kind = 'vmem'
            if 'lds' in self.mods.split():
                self.uses = sum(R, []) + [('s', 'm0')]
            else:
                self.defs = R[0]; self.uses = sum(R[1:], [])
        elif op.startswith('buffer_store') or op.startswith('global_store') or op.startswith('buffer_atomic'):
            self.kind = 'vmem'; self.uses = sum(R, [])
            self.wide = ('x4' in op or 'x3' in op)
            self.data = R[0] if op.startswith('buffer') else R[1]
        elif op.startswith('ds_read'):
            self.kind = 'ds'; self.defs = R[0]; self.uses = sum(R[1:], [])
        elif op.startswith('ds_'):
            self.kind = 'ds'; self.uses = sum(R, [])
        elif op.startswith('s_cbranch') or op == 's_branch':
            self.kind = 'branch'
        elif op.startswith('s_cmp') or op in ('s_waitcnt', 's_barrier', 's_nop', 's_sleep', 's_endpgm', 's_setprio'):
            self.kind = 'salu'; self.uses = sum(R, [])
        elif op.startswith('s_'):
            self.kind = 'salu'; self.defs = R[0]; self.uses = sum(R[1:], [])
            if 'saveexec' in op:
                self.defs = self.defs + [('s', 'exec')]
        self.states = 0 if self.kind == 'none' else 1
        if op == 's_nop':
            self.states = int(ops[0]) + 1
        self.dpp = ('row_' in self.mods or 'quad_perm' in self.mods or 'dpp' in op)

def need(prod, cons):
    n = 0
    pd, cu, cd = set(prod.defs), set(cons.uses), set(cons.defs)
    if prod.kind == 'valu':
        vd = {r for r in pd if r[0] in 'va'}
        sd = {r for r in pd if r[0] == 's'}
        if cons.kind == 'mfma' and vd & cu: n = max(n, 2)
        if cons.kind == 'valu':
            if cons.dpp and vd & cu: n = max(n, 2)
            if cons.op.startswith('v_permlane') and vd & cu: n = max(n, 2)
            if cons.op.startswith(('v_readfirstlane', 'v_readlane')) and vd & cu: n = max(n, 1)
            if prod.op in TRANS and cons.op not in TRANS and vd & cu: n = max(n, 1)
            if sd & cu: n = max(n, 2)
        if cons.kind == 'vmem' and sd & cu: n = max(n, 5)
        if cons.kind == 'salu' and sd & cu: n = max(n, 2)
        if cons.kind == 'branch' and 'vcc' in cons.op and ('s', 'vcc') in sd: n = max(n, 2)
    if prod.kind == 'mfma':
        big = 12 if prod.passes == 8 else 8
        if cons.kind == 'mfma':
            if pd & set(cons.srcab): n = max(n, big)
            if pd & set(cons.srcc):
                same = (prod.defs == cons.srcc and prod.passes == cons.passes)
                n = max(n, 0 if same else (10 if prod.passes == 8 else 6))
            elif pd & cd:
                n = max(n, big)
        elif cons.kind in ('valu', 'vmem', 'ds'):
            if pd & (cu | cd): n = max(n, big)
            if cons.kind == 'valu' and set(prod.srcc) & cd: n = max(n, 7 if prod.passes == 8 else 3)
    if prod.kind == 'vmem' and getattr(prod, 'wide', False):
        if cons.kind in ('valu', 'mfma') and set(prod.data) & cd: n = max(n, 2)
        elif set(prod.data) & cd: n = max(n, 1)
    if prod.kind == 'salu' and ('s', 'm0') in pd and ('s', 'm0') in cu and cons.kind == 'vmem':
        n = max(n, 1)
    if prod.kind == 'salu' and ('s', 'exec') in pd and cons.kind == 'valu' and cons.dpp:
        n = max(n, 0)
    return n

class Asm:
    def __init__(self):
        self.ins = []
        self.vm = []
        self.nlab = 0
    def __call__(self, text):
        for line in text.split('\n'):
            line = line.strip()
            if line:
                i = Ins(line)
                self.ins.append(i)
                if i.kind == 'vmem':
                    self.vm.append(len(self.ins))
        return len(self.ins)
    def label(self, base):
        self.nlab += 1
        return f"L{base}_{self.nlab}"
    def tok(self):
        return len(self.vm)
    def wait_vm(self, tok, extra=''):
        n = len(self.vm) - tok
        assert 0 <= n
        self(f"s_waitcnt vmcnt({min(n, 63)}) {extra}".strip())
    def finish(self):
        out = []
        window = []
        for i in self.ins:
            if i.kind == 'none':
                out.append(i); continue
            req = 0
            for p, el in window:
                req = max(req, need(p, i) - el)
            if i.kind == 'branch':
                for p, el in window:
                    worst = 0
                    if p.kind == 'mfma': worst = 12 if p.passes == 8 else 8
                    elif p.kind == 'valu':
                        worst = 5 if any(r[0] == 's' for r in p.defs) else 2
                    elif p.kind == 'vmem' and getattr(p, 'wide', False): worst = 2
                    elif p.kind == 'salu' and ('s', 'm0') in p.defs: worst = 1
                    req = max(req, worst - 1 - el)
            while req > 0:
                k = min(req, 16)
                nop = Ins(f"s_nop {k-1}")
                out.append(nop)
                window = [(p, el + k) for p, el in window]
                req -= k
            out.append(i)
            window = [(p, el + i.states) for p, el in window if el + i.states < 20]
            window.append((i, 0))
        return '\n'.join(('' if (x.label or x.directive) else '    ') + x.text for x in out)
```

```python
import sys
from asmlib import Asm

KNAME = "concat_heads__spectral_gfnet__linear_attn_block__prompt_kernel"
STAMPS = "--stamps" in sys.argv
OUT = [a for a in sys.argv[1:] if not a.startswith("--")]
OUT = OUT[0] if OUT else "kernel.s"
SPIN_MAX = 200000

XOFF, XPOFF, XEOFF, XEPOFF = 0, 0x200000, 0x400000, 0x410000
KVOFF, OOFF, EOFF, STOFF = 0x500000, 0x600000, 0x420000, 0x1000000
KVREC = 1152
SLOT = 24576
XT, E1 = 122880, 155648
S3 = XT
WOS = 0
WT, ZR, IMG, WE, Z256, XET = 73728, 90112, 90624, 91712, 92224, 92288
FST = WT
XTL, E3 = 98304, 113664
RED = E1
OT = XT
LDS_BYTES = 163840
AX, WR, WI, BX, WQ, WO, OU, WS = 24, 28, 32, 36, 40, 44, 48, 52
sW, sSG, sQ, sRB, sHP, sK1, sJP, sE2, sRB32, sCB = 56, 57, 58, 59, 60, 61, 62, 63, 64, 65
sT, sE, sCNT, sSO, sA, sB, sC, sD = 66, 67, 68, 69, 70, 71, 72, 73
sXB, sWB, sEXT, sHEAD, sHEND, sM0X, sM0W = 74, 75, 76, 77, 78, 79, 80
sTG = 82
sMK = 86
sSV = 88
sUB = 90
sST = 92
vL = 1
TW = 96
PC, PS = 128, 160
H3, B2, B3 = 192, 200, 216
vM = 232
vTO = 233
vTC = 237
vTR0, vTR1 = 239, 240
vL16 = 241
vSTR = 242
vXA = 243
vWK, vWV = 247, 248
vXD0, vXD1, vWD = 249, 250, 251
vEW = 252
vSTP = 254
vDUM = 255

a = Asm()

def v(i, n=1):
    return f"v{i}" if n == 1 else f"v[{i}:{i+n-1}]"
def ag(i, n=1):
    return f"a{i}" if n == 1 else f"a[{i}:{i+n-1}]"
def s(i, n=1):
    return f"s{i}" if n == 1 else f"s[{i}:{i+n-1}]"
def fl(x):
    import struct
    return "0x%08x" % struct.unpack("<I", struct.pack("<f", x))[0]

nstamp = [0]
def stamp():
    if not STAMPS:
        return
    i = nstamp[0]; nstamp[0] += 1
    a(f"s_memrealtime {s(sST,2)}\ns_memtime {s(sST+2,2)}\ns_waitcnt lgkmcnt(0)\nv_writelane_b32 {v(vSTP)}, {s(sST)}, {i}\nv_writelane_b32 {v(vSTP)}, {s(sST+2)}, {i+32}")

def srd(d, b, n):
    a(f"s_mov_b32 s{d}, s{b}\ns_mov_b32 s{d+1}, s{b+1}\ns_mov_b32 s{d+2}, {n}\ns_mov_b32 s{d+3}, 0x20000")

def mfma16(d, x, y, c):
    a(f"v_mfma_f32_16x16x32_bf16 {v(d,4)}, {x}, {y}, {c}")
def mfma32(d, x, y, c):
    a(f"v_mfma_f32_32x32x16_bf16 {v(d,16)}, {x}, {y}, {c}")
def cvt(d, x, y, nx=False, ny=False):
    return f"v_cvt_pk_bf16_f32 {v(d)}, {'-' if nx else ''}{v(x)}, {'-' if ny else ''}{v(y)}"

def dma(voff, rs, lds_first, so_first, n, lds_step, so_step, flags=""):
    for i in range(n):
        if i == 0:
            a(lds_first); a(so_first)
        else:
            a(f"s_add_u32 m0, m0, {lds_step}\ns_add_u32 {s(sSO)}, {s(sSO)}, {so_step}")
        a(f"buffer_load_dwordx4 {v(voff)}, {s(rs,4)}, {s(sSO)} offen {flags} lds".replace("  ", " "))

def spin_tail(lab, acc, mask_v=None, mask_imm=None):
    done = a.label("ok")
    if mask_v is not None:
        a(f"v_and_b32 {v(acc)}, {v(mask_v)}, {v(acc)}")
    elif mask_imm is not None:
        a(f"v_and_b32 {v(acc)}, {mask_imm}, {v(acc)}")
    a(f"v_cmp_ne_u32 vcc, 0, {v(acc)}\ns_cbranch_vccz {done}\ns_sub_u32 {s(sCNT)}, {s(sCNT)}, 1\ns_cmp_lg_u32 {s(sCNT)}, 0\ns_cbranch_scc1 {lab}\n{done}:")

a(f"{KNAME}:")
a(f"s_cmp_ge_u32 s2, 256\ns_cbranch_scc1 L_end")
a("s_load_dwordx16 s[4:19], s[0:1], 0\ns_load_dwordx2 s[20:21], s[0:1], 64")
a("s_getpc_b64 s[22:23]\nL_pc:")
if STAMPS:
    a(f"v_mov_b32 {v(vSTP)}, 0")
a(f"""v_lshlrev_b32 v2, 7, v0
v_min_u32 v2, L_end-L_pc, v2
global_load_dword {v(vDUM)}, v2, s[22:23]
v_and_b32 {v(vL)}, 63, v0
v_lshrrev_b32 v3, 6, v0
v_lshlrev_b32 {v(vL16)}, 4, {v(vL)}
v_readfirstlane_b32 {s(sW)}, v3
s_and_b32 {s(sA)}, s2, 7
s_lshr_b32 {s(sB)}, s2, 3
s_lshr_b32 {s(sC)}, {s(sB)}, 2
s_and_b32 {s(sQ)}, {s(sB)}, 3
s_lshl_b32 {s(sSG)}, {s(sC)}, 3
s_add_u32 {s(sSG)}, {s(sSG)}, {s(sA)}
s_lshr_b32 {s(sRB)}, {s(sA)}, 1
s_lshl_b32 {s(sRB)}, {s(sRB)}, 2
s_add_u32 {s(sRB)}, {s(sRB)}, {s(sQ)}
s_and_b32 {s(sHP)}, {s(sA)}, 1
s_lshl_b32 {s(sHP)}, {s(sHP)}, 3
s_add_u32 {s(sHP)}, {s(sHP)}, {s(sC)}
s_lshl_b32 {s(sRB32)}, {s(sA)}, 3
s_add_u32 {s(sRB32)}, {s(sRB32)}, {s(sC)}
s_mov_b32 {s(sCB)}, {s(sQ)}
s_and_b32 {s(sE2)}, {s(sB)}, 1
s_bfe_u32 {s(sK1)}, {s(sB)}, 0x10001
s_lshl_b32 {s(sD)}, {s(sA)}, 1
s_add_u32 {s(sK1)}, {s(sK1)}, {s(sD)}
s_bfe_u32 {s(sD)}, {s(sB)}, 0x10002
s_lshl_b32 {s(sD)}, {s(sD)}, 4
s_add_u32 {s(sK1)}, {s(sK1)}, {s(sD)}
s_lshr_b32 {s(sJP)}, {s(sB)}, 3""")
a(f"""v_lshrrev_b32 v4, 3, {v(vL)}
v_and_b32 v5, 7, {v(vL)}
v_lshrrev_b32 v6, 4, {v(vL)}
v_xor_b32 v7, v5, v6
v_lshlrev_b32 v7, 4, v7
v_lshl_add_u32 {v(vXD0)}, v4, 10, v7
v_xor_b32 {v(vXD1)}, 64, {v(vXD0)}
v_mul_u32_u24 v8, 3072, v4
v_and_b32 v9, 3, {v(vL)}
v_lshl_add_u32 v8, v9, 4, v8
v_lshrrev_b32 v10, 2, v5
v_xor_b32 v10, v10, v6
v_and_b32 v10, 1, v10
v_lshlrev_b32 v10, 10, v10
v_add_u32 v8, 1024, v8
v_add_u32 {v(vWD)}, v8, v10
s_lshl_b32 {s(sA)}, {s(sW)}, 19
s_lshl_b32 {s(sB)}, {s(sSG)}, 10
s_add_u32 {s(sA)}, {s(sA)}, {s(sB)}
s_lshl_b32 {s(sB)}, {s(sW)}, 13
s_add_u32 {s(sB)}, {s(sB)}, {XT}
s_lshl_b32 {s(sXB)}, {s(sRB)}, 17
s_lshl_b32 {s(sC)}, {s(sW)}, 15
s_add_u32 {s(sXB)}, {s(sXB)}, {s(sC)}
s_mul_i32 {s(sWB)}, {s(sW)}, {16*3072}
s_lshl_b32 {s(sC)}, {s(sHP)}, 6
s_add_u32 {s(sWB)}, {s(sWB)}, {s(sC)}
s_lshl_b32 {s(sM0X)}, {s(sW)}, 12
s_lshl_b32 {s(sM0W)}, {s(sW)}, 11
s_add_u32 {s(sM0W)}, {s(sM0W)}, 16384
s_waitcnt lgkmcnt(0)""")
stamp()
srd(AX, 4, 2097152)
dma(vL16, AX, f"s_mov_b32 m0, {s(sB)}", f"s_mov_b32 {s(sSO)}, {s(sA)}", 8, 1024, 65536)
tokXT = a.tok()
srd(BX, 10, 2097152)
srd(WQ, 12, 1572864)
a(f"s_add_u32 s22, s20, {EOFF}\ns_addc_u32 s23, s21, 0\ns_load_dword {s(sE)}, s[22:23], 0")

tokC = {}
def issue_chunk(c):
    sl = (c % 5) * SLOT
    for i in range(4):
        a(f"s_add_u32 m0, {s(sM0X)}, {sl + i*1024}\ns_add_u32 {s(sSO)}, {s(sXB)}, {i*8192 + c*128}")
        a(f"buffer_load_dwordx4 {v(vXD1 if i & 1 else vXD0)}, {s(BX,4)}, {s(sSO)} offen lds")
    for i in range(2):
        a(f"s_add_u32 m0, {s(sM0W)}, {sl + i*1024}\ns_add_u32 {s(sSO)}, {s(sWB)}, {(64*c + 8*i)*3072}")
        a(f"buffer_load_dwordx4 {v(vWD)}, {s(WQ,4)}, {s(sSO)} offen lds")
    tokC[c] = a.tok()
for c in range(5):
    issue_chunk(c)
stamp()
srd(WR, 6, 1052672)
srd(WI, 8, 1052672)
srd(WO, 14, 524288)
srd(OU, 16, 4194304)
srd(WS, 20, 268435456)

RB0, RB1, GRE, GIM, GC, GS, GN = 96, 100, 104, 108, 112, 120, 128
T0 = 140
a(f"""v_and_b32 v2, 15, {v(vL)}
v_lshrrev_b32 v3, 4, {v(vL)}
v_bfe_u32 v4, v2, 1, 2
s_lshl_b32 {s(sA)}, {s(sQ)}, 2
v_add_u32 v4, {s(sA)}, v4
v_and_b32 v5, 1, v2
v_cvt_f32_u32 v6, v4
v_mul_f32 v6, {fl(1/32)}, v6
v_cvt_f32_u32 v7, v5
v_mul_f32 v7, {fl(0.25)}, v7
v_cmp_eq_u32 vcc, 0, v4
v_cmp_eq_u32 {s(sSV,2)}, 1, v5
s_and_b64 vcc, vcc, {s(sSV,2)}
v_cndmask_b32 v6, v6, 0.5, vcc
v_cndmask_b32 v7, v7, 0, vcc
v_lshlrev_b32 v8, 2, v3
v_cvt_f32_u32 v8, v8
v_fma_f32 v9, v8, v6, v7""")
for j in range(8):
    d = j if j < 4 else 12 + j
    a(f"v_fma_f32 {v(T0+j)}, v6, {float(d) if d in (0,1,2,4) else d}, v9" if False else
      f"v_mov_b32 v10, {fl(float(d))}\nv_fma_f32 {v(T0+j)}, v6, v10, v9")
for j in range(8):
    a(f"v_cos_f32 {v(T0+j)}, {v(T0+j)}")
a(f"v_cmp_gt_u32 vcc, 8, v2")
for j in range(4):
    a(cvt(T0+8+j, T0+2*j, T0+2*j+1))
for j in range(4):
    a(f"v_cndmask_b32 {v(RB0+j)}, 0, {v(T0+8+j)}, vcc\nv_cndmask_b32 {v(RB1+j)}, {v(T0+8+j)}, 0, {s(sSV,2)}".split("\n")[0])
    a(f"v_xor_b32 {v(RB1+j)}, {v(RB0+j)}, {v(T0+8+j)}")
a(f"""s_lshl_b32 {s(sA)}, {s(sQ)}, 2
s_add_u32 {s(sA)}, {s(sA)}, {s(sW)}
s_sub_u32 {s(sB)}, 32, {s(sA)}
s_cmp_eq_u32 {s(sA)}, 0
s_cselect_b32 {s(sB)}, 16, {s(sB)}
s_cselect_b64 {s(sMK,2)}, -1, 0
v_lshrrev_b32 v4, 2, v2
v_and_b32 v5, 1, v2
v_lshl_add_u32 v4, v4, 1, v5
v_lshlrev_b32 v4, 5, v4
v_bfe_u32 v5, v2, 1, 1
v_mov_b32 v6, {s(sA)}
v_mov_b32 v7, {s(sB)}
v_cmp_eq_u32 vcc, 1, v5
v_lshrrev_b32 v8, 1, v3
v_cvt_f32_u32 v10, v5
v_cndmask_b32 v6, v6, v7, vcc
v_add_u32 v4, v4, v6
v_cvt_f32_u32 v4, v4
v_mul_f32 v4, {fl(1/512)}, v4
v_cvt_f32_u32 v9, v8
v_fma_f32 v10, v10, 0.5, {'-0.5'}
v_add_f32 v10, {fl(0.25)}, v10
v_mul_f32 v10, v10, v9
v_cndmask_b32 v10, v10, 0, {s(sMK,2)}
v_cmp_ne_u32 vcc, v5, v8
s_and_b64 vcc, vcc, {s(sMK,2)}
v_mov_b32 v11, {fl(2.0**-19)}
v_cndmask_b32 v11, v11, 0, vcc
v_cmp_eq_u32 vcc, 0, v2
s_and_b64 vcc, vcc, {s(sMK,2)}
v_mul_f32 v12, 0.5, v11
v_cndmask_b32 v11, v11, v12, vcc
v_cndmask_b32 v13, v4, 0.5, vcc
v_add_f32 v14, {fl(0.25)}, v10
v_cndmask_b32 v14, v14, 0, vcc
v_and_b32 v15, 1, v3
v_lshlrev_b32 v15, 1, v15
v_xor_b32 v16, {s(sW)}, v15
v_xor_b32 v17, 1, v16
v_lshlrev_b32 v16, 2, v16
v_lshlrev_b32 v17, 2, v17
v_cvt_f32_u32 v16, v16
v_cvt_f32_u32 v17, v17""")
for j in range(8):
    a(f"v_add_f32 v18, {float(j & 3) if (j & 3) != 3 else fl(3.0)}, {v(16 if j < 4 else 17)}")
    a(f"v_fma_f32 {v(T0+j)}, v18, v4, v10\nv_fma_f32 {v(T0+8+j)}, v18, v13, v14")
for j in range(16):
    a(f"v_cos_f32 {v(T0+j)}, {v(T0+j)}")
for j in range(16):
    a(f"v_mul_f32 {v(T0+j)}, v11, {v(T0+j)}")
for j in range(4):
    a(cvt(GRE+j, T0+2*j, T0+2*j+1)); a(cvt(GIM+j, T0+8+2*j, T0+8+2*j+1))
a(f"""v_lshlrev_b32 v4, 9, v3
v_add_u32 v4, {s(sSG)}, v4
v_cvt_f32_u32 v4, v4
v_mul_f32 v4, {fl(1/2048)}, v4
v_cvt_f32_u32 v5, v2
v_add_f32 v6, {fl(16.0)}, v5""")
for b in range(2):
    for j in range(8):
        a(f"v_add_f32 v7, {fl(j/32)}, v4\nv_mul_f32 {v(T0+j)}, v7, {v(5+b)}")
    for j in range(8):
        a(f"v_sin_f32 {v(T0+8+j)}, {v(T0+j)}\nv_cos_f32 {v(T0+j)}, {v(T0+j)}")
    for j in range(4):
        a(cvt(GC+4*b+j, T0+2*j, T0+2*j+1))
        a(cvt(GS+4*b+j, T0+8+2*j, T0+8+2*j+1))
        a(cvt(GN+4*b+j, T0+8+2*j, T0+8+2*j+1, True, True))
vA1, vA2, vA3, vA4, vA5 = 60, 61, 62, 63, 64
a(f"""s_lshl_b32 {s(sA)}, {s(sW)}, 13
s_add_u32 {s(sA)}, {s(sA)}, {XT}
v_lshl_add_u32 {v(vA1)}, {v(vL)}, 3, {s(sA)}
v_bfe_u32 v4, v2, 1, 2
v_xor_b32 v5, v3, v4
v_lshlrev_b32 v5, 3, v5
v_lshl_add_u32 v5, v4, 11, v5
v_and_b32 v6, 1, v2
v_lshl_add_u32 v5, v6, 5, v5
v_lshrrev_b32 v6, 3, v2
v_lshl_add_u32 v5, v6, 6, v5
s_lshl_b32 {s(sA)}, {s(sW)}, 9
s_add_u32 {s(sA)}, {s(sA)}, {E1}
v_add_u32 {v(vA2)}, {s(sA)}, v5
v_lshrrev_b32 v4, 2, v2
v_lshlrev_b32 v4, 9, v4
v_and_b32 v5, 3, v2
v_lshl_add_u32 v4, v5, 6, v4
v_lshl_add_u32 v4, v3, 4, v4
s_lshl_b32 {s(sA)}, {s(sW)}, 11
s_add_u32 {s(sA)}, {s(sA)}, {E1}
v_add_u32 {v(vA3)}, {s(sA)}, v4
v_lshl_add_u32 v4, v3, 5, v2
v_mul_u32_u24 v4, 80, v4
s_lshl_b32 {s(sA)}, {s(sW)}, 3
s_add_u32 {s(sA)}, {s(sA)}, {S3}
v_add_u32 {v(vA4)}, {s(sA)}, v4
v_lshrrev_b32 v4, 2, {v(vL)}
v_mul_u32_u24 v4, 80, v4
v_and_b32 v5, 3, {v(vL)}
v_lshl_add_u32 {v(vSTR)}, v5, 4, v4
s_mul_i32 {s(sA)}, {s(sW)}, 2560
s_add_u32 {s(sA)}, {s(sA)}, {S3}
v_add_u32 {v(vA5)}, {s(sA)}, {v(vSTR)}
v_mov_b32 {v(vM)}, 0x00010001
s_waitcnt lgkmcnt(0)
s_add_u32 {s(sE)}, {s(sE)}, 1
s_and_b32 {s(sT)}, {s(sE)}, 0xff
s_mul_i32 {s(sT)}, {s(sT)}, 0x01010101
s_xor_b32 {s(sT)}, {s(sT)}, 0x8e592b00
s_lshl_b32 {s(sA)}, {s(sW)}, 2
s_lshr_b32 {s(sA)}, {s(sT)}, {s(sA)}""")
for c in range(2):
    for d in range(2):
        a(f"s_bfe_u32 {s(sTG+2*c+d)}, {s(sA)}, {0x20000 + 16*c + 2*d}\ns_mul_i32 {s(sTG+2*c+d)}, {s(sTG+2*c+d)}, 0x8001")

stamp()
a.wait_vm(tokXT)
stamp()
for r in range(8):
    a(f"ds_read_b64_tr_b16 {v(4+4*r,2)}, {v(vA1)} offset:{r*1024}\nds_read_b64_tr_b16 {v(6+4*r,2)}, {v(vA1)} offset:{r*1024+512}")
for p in range(4):
    a(f"s_waitcnt lgkmcnt({12-4*p})")
    mfma16(36+4*p, v(4+8*p,4), v(RB0,4), "0")
    mfma16(36+4*p, v(8+8*p,4), v(RB1,4), v(36+4*p,4))
for p in range(4):
    a(cvt(52+2*p, 36+4*p, 37+4*p)); a(cvt(53+2*p, 38+4*p, 39+4*p))
    a(f"ds_write_b64 {v(vA2)}, {v(52+2*p,2)} offset:{p*128}")
a("s_waitcnt lgkmcnt(0)\ns_barrier")
a(f"ds_read_b128 {v(4,4)}, {v(vA3)}\nds_read_b128 {v(8,4)}, {v(vA3)} offset:256")
a("s_waitcnt lgkmcnt(1)")
mfma16(12, v(4,4), v(GRE,4), "0"); mfma16(20, v(4,4), v(GIM,4), "0")
a("s_waitcnt lgkmcnt(0)")
mfma16(16, v(8,4), v(GRE,4), "0"); mfma16(24, v(8,4), v(GIM,4), "0")
for j in range(4):
    a(cvt(28+j, 12+2*j, 13+2*j))
for j in range(4):
    a(cvt(32+j, 20+2*j, 21+2*j))
lab = a.label("nox")
a(f"s_add_u32 {s(sA)}, {s(sQ)}, {s(sW)}\ns_cmp_lg_u32 {s(sA)}, 0\ns_cbranch_scc1 {lab}")
for b in range(2):
    mfma16(36+8*b, v(32,4), v(GC+4*b,4), "0"); mfma16(40+8*b, v(32,4), v(GN+4*b,4), "0")
a(f"""v_cmp_ne_u32 vcc, 0, v2
s_lshl_b32 {s(sA)}, {s(sSG)}, 8
s_add_u32 {s(sA)}, {s(sA)}, {XEOFF}
v_lshlrev_b32 v56, 3, {v(vL)}
v_mov_b32 v53, {s(sT)}
v_mov_b32 v55, {s(sT)}""")
for j in range(4):
    a(f"v_cndmask_b32 {v(32+j)}, 0, {v(32+j)}, vcc")
a(cvt(52, 36, 40)); a(cvt(54, 44, 48))
a(f"""s_mov_b64 exec, 0xffff
buffer_store_dwordx2 v[52:53], v56, {s(WS,4)}, {s(sA)} offen sc0 sc1
buffer_store_dwordx2 v[54:55], v56, {s(WS,4)}, {s(sA)} offen offset:128 sc0 sc1
s_mov_b64 exec, -1""")
a.vm = a.vm[:-2]
a(f"{lab}:")
for b in range(2):
    mfma16(36+8*b, v(28,4), v(GC+4*b,4), "0"); mfma16(40+8*b, v(32,4), v(GC+4*b,4), "0")
for b in range(2):
    mfma16(36+8*b, v(32,4), v(GS+4*b,4), v(36+8*b,4)); mfma16(40+8*b, v(28,4), v(GN+4*b,4), v(40+8*b,4))
for b in range(2):
    for c in range(2):
        r = 36 + 8*b + 4*c; d = 4 + 4*b + 2*c
        a(cvt(d, r, r+1)); a(cvt(d+1, r+2, r+3))
        a(f"v_bfi_b32 {v(d)}, {v(vM)}, {s(sTG+2*c)}, {v(d)}\nv_bfi_b32 {v(d+1)}, {v(vM)}, {s(sTG+2*c+1)}, {v(d+1)}")
        a(f"ds_write_b64 {v(vA4)}, {v(d,2)} offset:{b*1280 + c*32}")
a("s_waitcnt lgkmcnt(0)\ns_barrier")
a(f"ds_read_b128 {v(12,4)}, {v(vA5)}\nds_read_b128 {v(16,4)}, {v(vA5)} offset:1280")
a(f"""s_lshl_b32 {s(sA)}, {s(sSG)}, 15
s_lshl_b32 {s(sB)}, {s(sQ)}, 13
s_add_u32 {s(sA)}, {s(sA)}, {s(sB)}
s_lshl_b32 {s(sB)}, {s(sW)}, 11
s_add_u32 {s(sA)}, {s(sA)}, {s(sB)}
s_waitcnt lgkmcnt(1)
buffer_store_dwordx4 {v(12,4)}, {v(vL16)}, {s(WS,4)}, {s(sA)} offen sc0 sc1
s_waitcnt lgkmcnt(0)
buffer_store_dwordx4 {v(16,4)}, {v(vL16)}, {s(WS,4)}, {s(sA)} offen offset:1024 sc0 sc1""")
stamp()

G = []
def g(text):
    G.extend(x for x in text.split("\n") if x.strip())
t = 68
g(f"""v_and_b32 {v(t)}, 15, {v(vL)}
v_lshrrev_b32 {v(t+1)}, 4, {v(vL)}
v_cvt_f32_u32 {v(t+2)}, {v(t)}
v_mul_f32 {v(t+2)}, {fl(1/64)}, {v(t+2)}
v_lshlrev_b32 {v(t+3)}, 2, {v(t+1)}
v_cvt_f32_u32 {v(t+3)}, {v(t+3)}
v_and_b32 {v(t+4)}, 1, {v(t)}
v_mul_u32_u24 {v(t+4)}, 0x8000, {v(t+4)}
v_lshl_or_b32 {v(t+4)}, {v(t+4)}, 16, {v(t+4)}""")
cs = t + 8
for j in range(8):
    d = j if j < 4 else 12 + j
    g(f"v_add_f32 {v(t+5)}, {fl(float(d))}, {v(t+3)}\nv_mul_f32 {v(cs+j)}, {v(t+5)}, {v(t+2)}")
for j in range(8):
    g(f"v_sin_f32 {v(cs+8+j)}, {v(cs+j)}\nv_cos_f32 {v(cs+j)}, {v(cs+j)}")
def rot(j, blk, want_sin):
    tt = (blk * (j & 3) + (3 if want_sin else 0)) & 3
    return [(cs+j, False), (cs+8+j, True), (cs+j, True), (cs+8+j, False)][tt]
for blk in range(4):
    for base, ws_ in ((PC, False), (PS, True)):
        for jj in range(4):
            (r0, n0), (r1, n1) = rot(2*jj, blk, ws_), rot(2*jj+1, blk, ws_)
            d = base + 8*blk + jj
            g(cvt(d, r0, r1, n0, n1))
            g(f"v_xor_b32 {v(d+4)}, {v(t+4)}, {v(d)}")
g(f"""v_and_b32 {v(t+2)}, 7, {v(vL)}
s_lshl_b32 {s(sD)}, {s(sQ)}, 3
v_add_u32 {v(t+2)}, {s(sD)}, {v(t+2)}
v_lshlrev_b32 {v(t+2)}, 6, {v(t+2)}
v_add_u32 {v(t+2)}, {s(sSG)}, {v(t+2)}
v_cvt_f32_u32 {v(t+2)}, {v(t+2)}
v_mul_f32 {v(t+2)}, {fl(1/2048)}, {v(t+2)}
v_bfe_u32 {v(t+4)}, {v(vL)}, 3, 1
v_cvt_f32_u32 {v(t+4)}, {v(t+4)}
v_mul_f32 {v(t+4)}, {fl(-0.25)}, {v(t+4)}""")
for j in range(8):
    d = j if j < 4 else 12 + j
    g(f"v_add_f32 {v(t+5)}, {fl(float(d))}, {v(t+3)}\nv_fma_f32 {v(cs+j)}, {v(t+5)}, {v(t+2)}, {v(t+4)}")
for j in range(8):
    g(f"v_sin_f32 {v(cs+8+j)}, {v(cs+j)}\nv_cos_f32 {v(cs+j)}, {v(cs+j)}")
for jj in range(4):
    g(cvt(H3+jj, cs+2*jj, cs+2*jj+1)); g(cvt(H3+4+jj, cs+8+2*jj, cs+8+2*jj+1, True, True))
g(f"""v_bfe_u32 {v(t)}, {v(vL)}, 3, 2
v_and_b32 {v(t+1)}, 3, {v(vL)}
v_lshl_add_u32 {v(t)}, {v(t)}, 2, {v(t+1)}
v_cvt_f32_u32 {v(t)}, {v(t)}
v_lshrrev_b32 {v(t+1)}, 5, {v(vL)}
v_cvt_f32_u32 {v(t+1)}, {v(t+1)}
v_mul_f32 {v(t+2)}, {fl(1/16)}, {v(t)}
v_mul_f32 {v(t+3)}, {fl(0.25)}, {v(t+1)}
v_bfe_i32 {v(t+4)}, {v(vL)}, 2, 1""")
for j in range(8):
    g(f"v_mov_b32 {v(t+5)}, {fl(float(j))}\nv_fma_f32 {v(cs+j)}, {v(t+5)}, {v(t+2)}, {v(t+3)}")
for j in range(8):
    g(f"v_sin_f32 {v(cs+8+j)}, {v(cs+j)}\nv_cos_f32 {v(cs+j)}, {v(cs+j)}")
for k in range(2):
    for jj in range(4):
        d = B2 + 8*k + jj
        g(cvt(d, cs+8*k+2*jj, cs+8*k+2*jj+1))
        g(f"v_and_b32 {v(d+4)}, {v(t+4)}, {v(d)}\nv_xor_b32 {v(d)}, {v(d+4)}, {v(d)}")
g(f"v_mul_f32 {v(t+2)}, {fl(1/512)}, {v(t)}\nv_mul_f32 {v(t+3)}, 4.0, {v(t+1)}")
for i in range(16):
    f1 = 8*(i >> 2) + (i & 3)
    g(f"v_add_f32 {v(t+5)}, {fl(float(f1))}, {v(t+3)}\nv_mul_f32 {v(TW+i)}, {v(t+5)}, {v(t+2)}")
    g(f"v_sin_f32 {v(TW+16+i)}, {v(TW+i)}\nv_cos_f32 {v(TW+i)}, {v(TW+i)}")
g(f"""v_and_b32 {v(t)}, 31, {v(vL)}
v_cvt_f32_u32 {v(t+2)}, {v(t)}
v_mul_f32 {v(t+2)}, {fl(1/32)}, {v(t+2)}
v_and_b32 {v(t+4)}, 1, {v(t)}
v_mul_u32_u24 {v(t+4)}, 0x8000, {v(t+4)}
v_lshl_or_b32 {v(t+4)}, {v(t+4)}, 16, {v(t+4)}""")
for j in range(8):
    f1 = 8*(j >> 2) + (j & 3)
    g(f"v_add_f32 {v(t+5)}, {fl(float(f1))}, {v(t+3)}\nv_mul_f32 {v(cs+j)}, {v(t+5)}, {v(t+2)}")
for j in range(8):
    g(f"v_sin_f32 {v(cs+8+j)}, {v(cs+j)}\nv_cos_f32 {v(cs+j)}, {v(cs+j)}")
for k in range(2):
    for jj in range(4):
        d = B3 + 8*k + jj
        g(cvt(d, cs+8*k+2*jj, cs+8*k+2*jj+1, k == 1, k == 1))
        g(f"v_xor_b32 {v(d+4)}, {v(t+4)}, {v(d)}")
g(f"""v_and_b32 {v(t)}, 3, {v(vL)}
v_lshlrev_b32 {v(t+1)}, 3, {v(t)}
v_lshrrev_b32 {v(t+1)}, {v(t+1)}, {s(sT)}""".replace(f"v_lshrrev_b32 {v(t+1)}, {v(t+1)}, {s(sT)}", f"v_lshrrev_b32_e64 {v(t+1)}, {v(t+1)}, {s(sT)}"))
for j in range(4):
    g(f"v_bfe_u32 {v(vTO+j)}, {v(t+1)}, {2*j}, 2\nv_mul_u32_u24 {v(vTO+j)}, 0x8001, {v(vTO+j)}")
g(f"""v_and_b32 {v(t+2)}, 15, {v(vL)}
v_lshrrev_b32_e64 {v(t+2)}, {v(t+2)}, {s(sT)}
v_bfe_i32 {v(vTC)}, {v(t+2)}, 0, 1
v_bfe_i32 {v(vTC+1)}, {v(t+2)}, 16, 1
v_lshrrev_b32 {v(t+2)}, 2, {v(vL)}
v_lshlrev_b32 {v(t+2)}, 6, {v(t+2)}
v_lshl_add_u32 {v(t+2)}, {v(t)}, 3, {v(t+2)}
v_bfe_u32 {v(t+3)}, {v(vL)}, 4, 1
v_lshl_add_u32 {v(vTR0)}, {v(t+3)}, 5, {v(t+2)}
v_xor_b32 {v(vTR1)}, 32, {v(vTR0)}""")
gpos = [0]
def fill(n):
    for _ in range(n):
        if gpos[0] < len(G):
            a(G[gpos[0]]); gpos[0] += 1

a(f"""v_and_b32 v4, 31, {v(vL)}
v_lshrrev_b32 v5, 5, {v(vL)}
v_bfe_u32 v6, v4, 1, 3
v_xor_b32 v6, v6, v5
v_lshlrev_b32 v7, 7, v4
v_add_u32 v7, {s(sM0X)}, v7""")
for tt in range(4):
    a(f"v_xor_b32 v8, {2*tt}, v6\nv_lshl_add_u32 {v(vXA+tt)}, v8, 4, v7")
a(f"""v_bfe_u32 v6, {v(vL)}, 2, 2
v_lshl_add_u32 v7, v5, 3, v6
v_lshlrev_b32 v7, 7, v7
v_lshrrev_b32 v6, 1, v6
v_lshl_add_u32 v7, v6, 6, v7
v_bfe_u32 v6, {v(vL)}, 4, 1
v_lshl_add_u32 v7, v6, 5, v7
v_and_b32 v6, 3, {v(vL)}
v_lshl_add_u32 v7, v6, 3, v7
v_add_u32 {v(vWK)}, 16384, v7
v_xor_b32 {v(vWV)}, 64, {v(vWK)}""")
a(f"""s_lshl_b32 {s(sUB)}, {s(sE2)}, 1
s_add_u32 {s(sUB)}, {s(sUB)}, {s(sW)}
s_lshl_b32 {s(sUB)}, {s(sUB)}, 13
s_lshl_b32 {s(sA)}, {s(sJP)}, 11
s_add_u32 {s(sUB)}, {s(sUB)}, {s(sA)}
s_lshl_b32 {s(sA)}, {s(sK1)}, 6
s_add_u32 {s(sUB)}, {s(sUB)}, {s(sA)}
s_lshl_b32 {s(sEXT)}, {s(sJP)}, 1
s_add_u32 {s(sEXT)}, {s(sEXT)}, {s(sE2)}
s_cmp_eq_u32 {s(sEXT)}, 7
s_cselect_b32 {s(sEXT)}, 1, 0""")
per_gap = (len(G) + 55) // 56
AK, AV, WF = 4, 20, 36
vT1, vT2 = 2, 3
cur = 0
for c in range(8):
    a.wait_vm(tokC[c])
    a("s_barrier")
    stamp()
    sl = (c % 5) * SLOT
    if sl != cur:
        dlt = (sl - cur) & 0xffffffff
        for r in (vXA, vXA+1, vXA+2, vXA+3, vWK, vWV):
            a(f"v_add_u32 {v(r)}, {dlt}, {v(r)}")
        cur = sl
    def reads(tt):
        a(f"ds_read_b128 {ag(16*c+4*tt,4)}, {v(vXA+tt)}")
        for k, ad in ((0, vWK), (1, vWV)):
            for u in range(2):
                a(f"ds_read_b64_tr_b16 {v(WF+8*tt+4*k+2*u,2)}, {v(ad)} offset:{tt*2048+u*512}")
    reads(0); reads(1); reads(2)
    if 1 <= c <= 3:
        issue_chunk(c + 4)
    if c == 4:
        a(f"""v_lshrrev_b32 {v(vT1)}, 3, {v(vL)}
v_mul_u32_u24 {v(vT1)}, 16448, {v(vT1)}
v_and_b32 {v(vT2)}, 7, {v(vL)}
v_lshl_add_u32 {v(vT1)}, {v(vT2)}, 4, {v(vT1)}
s_mul_i32 {s(sA)}, {s(sK1)}, 514
s_lshl_b32 {s(sB)}, {s(sJP)}, 7
s_add_u32 {s(sA)}, {s(sA)}, {s(sB)}
s_and_b32 {s(sB)}, {s(sW)}, 1
s_mul_i32 {s(sB)}, {s(sB)}, {32*16448}
s_add_u32 {s(sA)}, {s(sA)}, {s(sB)}
s_lshl_b32 {s(sB)}, {s(sW)}, 12
s_add_u32 {s(sB)}, {s(sB)}, {WT}""")
        l1, l2 = a.label("wi"), a.label("wj")
        a(f"s_cmp_ge_u32 {s(sW)}, 2\ns_cbranch_scc1 {l1}")
        dma(vT1, WR, f"s_mov_b32 m0, {s(sB)}", f"s_mov_b32 {s(sSO)}, {s(sA)}", 4, 1024, 8*16448)
        a(f"s_branch {l2}\n{l1}:")
        a.vm = a.vm[:-4]
        dma(vT1, WI, f"s_mov_b32 m0, {s(sB)}", f"s_mov_b32 {s(sSO)}, {s(sA)}", 4, 1024, 8*16448)
        a(f"{l2}:")
    if c == 5:
        a(f"""v_lshrrev_b32 {v(vT1)}, 2, {v(vL)}
v_mul_u32_u24 {v(vT1)}, 3072, {v(vT1)}
v_and_b32 {v(vT2)}, 3, {v(vL)}
v_lshl_add_u32 {v(vT1)}, {v(vT2)}, 4, {v(vT1)}
s_mul_i32 {s(sA)}, {s(sW)}, {128*3072}
s_lshl_b32 {s(sB)}, {s(sHP)}, 6
s_add_u32 {s(sA)}, {s(sA)}, {s(sB)}
s_lshl_b32 {s(sB)}, {s(sW)}, 13
s_add_u32 {s(sB)}, {s(sB)}, {XT}""")
        dma(vT1, WQ, f"s_mov_b32 m0, {s(sB)}", f"s_mov_b32 {s(sSO)}, {s(sA)}", 8, 1024, 16*3072)
        tokWQ = a.tok()
        lx = a.label("noew")
        a(f"""s_lshl_b32 {s(sA)}, {s(sEXT)}, 2
s_add_u32 {s(sA)}, {s(sA)}, {s(sW)}
s_cmp_lg_u32 {s(sA)}, 6
s_cbranch_scc1 {lx}
v_mul_u32_u24 {v(vT1)}, 16448, {v(vL)}
s_mul_i32 {s(sA)}, {s(sK1)}, 514
s_add_u32 {s(sA)}, {s(sA)}, 512
buffer_load_ushort {v(vEW)}, {v(vT1)}, {s(WR,4)}, {s(sA)} offen
buffer_load_ushort {v(vEW+1)}, {v(vT1)}, {s(WI,4)}, {s(sA)} offen
{lx}:""")
        a.vm = a.vm[:-2]
    for tt in range(4):
        if tt == 0:
            a("s_waitcnt lgkmcnt(10)")
        elif tt == 1:
            reads(3)
            a("s_waitcnt lgkmcnt(10)")
        else:
            a(f"s_waitcnt lgkmcnt({5*(3-tt)})")
        first = (c == 0 and tt == 0)
        mfma32(AK, ag(16*c+4*tt,4), v(WF+8*tt,4), "0" if first else v(AK,16))
        if c < 7: fill(per_gap)
        mfma32(AV, ag(16*c+4*tt,4), v(WF+8*tt+4,4), "0" if first else v(AV,16))
        if c < 7: fill(per_gap)
fill(len(G))
stamp()

def phi(acc, dst, t0):
    a(f"s_mov_b32 {s(sA)}, {fl(1.4426950408889634)}\ns_mov_b32 {s(sB)}, {fl(1e-6)}")
    for i in range(16):
        a(f"v_mul_f32 {v(t0+i)}, {s(sA)}, {v(acc+i)}")
    for i in range(16):
        a(f"v_exp_f32 {v(t0+i)}, {v(t0+i)} clamp\nv_max_f32 {v(acc+i)}, 0, {v(acc+i)}")
    for i in range(0, 16, 2):
        a(f"v_add_f32 {v(acc+i)}, {s(sB)}, {v(acc+i)}\nv_add_f32 {v(acc+i+1)}, {s(sB)}, {v(acc+i+1)}")
        a(f"v_pk_add_f32 {v(acc+i,2)}, {v(acc+i,2)}, {v(t0+i,2)}")
        a(cvt(dst + i//2, acc+i, acc+i+1))

phi(AK, 36, 52)
for i in range(8):
    a(cvt(44+i, AV+2*i, AV+2*i+1))
for i in range(4):
    a(f"v_mov_b32 {v(68+i)}, 0x3f803f80")
mfma32(4, v(36,4), v(44,4), "0")
mfma32(20, v(68,4), v(36,4), "0")
mfma32(4, v(40,4), v(48,4), v(4,16))
mfma32(20, v(68,4), v(40,4), v(20,16))
a(f"""s_mov_b32 {s(sMK)}, 0xffff0000
s_mov_b32 {s(sMK+1)}, 0xffff0000
v_and_b32 v52, 15, {v(vL)}
v_lshrrev_b32 v53, 5, {v(vL)}
v_lshl_add_u32 v52, v53, 4, v52
v_lshlrev_b32 v52, 4, v52
v_bfe_u32 v53, {v(vL)}, 4, 1
v_lshl_add_u32 v52, v53, 10, v52
s_lshl_b32 {s(sA)}, {s(sW)}, 11
s_add_u32 {s(sA)}, {s(sA)}, {RED}
v_add_u32 v52, {s(sA)}, v52
v_and_b32 v53, 31, {v(vL)}
s_lshl_b32 {s(sA)}, {s(sW)}, 7
s_add_u32 {s(sA)}, {s(sA)}, {ZR}
v_lshl_add_u32 v53, v53, 2, {s(sA)}
v_lshrrev_b32 v54, 2, {v(vL)}
v_lshlrev_b32 v54, 15, v54
v_bfe_u32 v55, {v(vL)}, 4, 1
v_lshlrev_b32 v55, 1, v55
v_and_b32 v56, 3, {v(vL)}
v_xor_b32 v55, v55, v56
v_lshl_add_u32 v94, v55, 4, v54""")
for i in range(8):
    a(f"v_cndmask_b32 {v(4+i)}, {v(4+i)}, {v(12+i)}, {s(sMK,2)}")
a(f"ds_write_b128 v52, {v(4,4)}\nds_write_b128 v52, {v(8,4)} offset:512\nds_write_b32 v53, v20")
a("s_waitcnt lgkmcnt(0)\ns_barrier")
stamp()
a(f"""s_cmp_eq_u32 {s(sW)}, 3
s_cselect_b32 {s(sHEND)}, 2, 1
s_cselect_b32 {s(sHEAD)}, 1, 0
s_cselect_b32 {s(sA)}, {s(sEXT)}, 0
s_sub_u32 {s(sHEAD)}, {s(sHEAD)}, {s(sA)}
s_cmp_eq_u32 {s(sW)}, 2
s_cselect_b32 {s(sA)}, {s(sEXT)}, 0
s_sub_u32 {s(sHEND)}, {s(sHEND)}, {s(sA)}
s_cmp_lt_u32 {s(sW)}, 2
s_cselect_b32 {s(sHEND)}, 0, {s(sHEND)}""")
lpub, lpube, lpubw, lbq = a.label("pub"), a.label("pube"), a.label("pubw"), a.label("bq")
vXO = 94
def x_issue():
    dma(vXO, WS, f"s_mov_b32 m0, {s(sC)}", f"s_add_u32 {s(sSO)}, {s(sUB)}, {XOFF}", 4, 1024, 16*32768, "sc0 sc1")
a(f"""s_mul_i32 {s(sC)}, {s(sW)}, 5120
s_add_u32 {s(sC)}, {s(sC)}, {XTL}
s_cmp_lt_u32 {s(sW)}, 2
s_cbranch_scc0 {lpubw}""")
x_issue()
a(f"s_waitcnt vmcnt(4)\ns_branch {lbq}\n{lpubw}:")
a(f"""s_mov_b32 {s(sD)}, {s(sHEAD)}
s_cmp_ge_u32 {s(sD)}, {s(sHEND)}
s_cbranch_scc1 {lpube}
{lpub}:
s_lshl_b32 {s(sA)}, {s(sD)}, 10
s_add_u32 {s(sA)}, {s(sA)}, {RED}
v_add_u32 v52, {s(sA)}, {v(vL16)}
s_lshl_b32 {s(sA)}, {s(sD)}, 6
s_add_u32 {s(sA)}, {s(sA)}, {ZR}
v_and_b32 v54, 15, {v(vL)}
v_lshl_add_u32 v53, v54, 2, {s(sA)}""")
for ww in range(4):
    a(f"ds_read_b128 {v(4+4*ww,4)}, v52 offset:{ww*2048}")
for ww in range(4):
    a(f"ds_read_b32 {v(20+ww)}, v53 offset:{ww*128}")
a(f"""s_lshl_b32 {s(sA)}, {s(sHP)}, 1
s_add_u32 {s(sA)}, {s(sA)}, {s(sD)}
s_lshl_b32 {s(sA)}, {s(sA)}, 4
s_add_u32 {s(sA)}, {s(sA)}, {s(sRB)}
s_mul_i32 {s(sA)}, {s(sA)}, {KVREC}
s_add_u32 {s(sA)}, {s(sA)}, {KVOFF}
v_lshlrev_b32 v55, 1, v54
v_lshrrev_b32_e64 v55, v55, {s(sT)}
v_lshlrev_b32 v54, 2, v54
s_waitcnt lgkmcnt(4)
v_pk_add_f32 v[4:5], v[4:5], v[8:9]
v_pk_add_f32 v[6:7], v[6:7], v[10:11]
v_pk_add_f32 v[12:13], v[12:13], v[16:17]
v_pk_add_f32 v[14:15], v[14:15], v[18:19]
v_pk_add_f32 v[4:5], v[4:5], v[12:13]
v_pk_add_f32 v[6:7], v[6:7], v[14:15]""")
for j in range(4):
    a(f"v_bfi_b32 {v(4+j)}, 3, {v(vTO+j)}, {v(4+j)}")
a(f"""buffer_store_dwordx4 v[4:7], {v(vL16)}, {s(WS,4)}, {s(sA)} offen sc0 sc1
s_waitcnt lgkmcnt(0)
v_add_f32 v20, v20, v21
v_add_f32 v22, v22, v23
v_add_f32 v20, v20, v22
v_bfi_b32 v20, 3, v55, v20
s_mov_b64 exec, 0xffff
buffer_store_dword v20, v54, {s(WS,4)}, {s(sA)} offen offset:1024 sc0 sc1
s_mov_b64 exec, -1
s_add_u32 {s(sD)}, {s(sD)}, 1
s_cmp_lt_u32 {s(sD)}, {s(sHEND)}
s_cbranch_scc1 {lpub}
{lpube}:""")
a(f"s_waitcnt vmcnt(2)\n{lbq}:\ns_barrier")
stamp()

def wo_issue(b):
    a(f"""v_lshrrev_b32 {v(vT1)}, 2, {v(vL)}
v_and_b32 {v(vT2)}, 3, {v(vL)}
v_lshlrev_b32 {v(vT2)}, 4, {v(vT2)}
v_lshl_add_u32 {v(vT1)}, {v(vT1)}, 10, {v(vT2)}
s_lshl_b32 {s(sA)}, {s(sCB)}, 8
s_lshl_b32 {s(sB)}, {s(sW)}, 6
s_add_u32 {s(sA)}, {s(sA)}, {s(sB)}
s_add_u32 {s(sA)}, {s(sA)}, {b*256*1024}
s_lshl_b32 {s(sB)}, {s(sW)}, 14
s_add_u32 {s(sB)}, {s(sB)}, {WOS}""")
    dma(vT1, WO, f"s_mov_b32 m0, {s(sB)}", f"s_mov_b32 {s(sSO)}, {s(sA)}", 16, 1024, 16384)
def wo_addr(r, t1):
    a(f"""v_bfe_u32 {v(r)}, {v(vL)}, 2, 2
v_lshrrev_b32 {v(t1)}, 5, {v(vL)}
v_lshl_add_u32 {v(r)}, {v(t1)}, 3, {v(r)}
v_lshlrev_b32 {v(r)}, 6, {v(r)}
v_and_b32 {v(t1)}, 1, {v(vL)}
v_lshl_add_u32 {v(r)}, {v(t1)}, 5, {v(r)}
v_bfe_u32 {v(t1)}, {v(vL)}, 1, 1
v_lshl_add_u32 {v(r)}, {v(t1)}, 3, {v(r)}
v_bfe_u32 {v(t1)}, {v(vL)}, 4, 1
v_lshl_add_u32 {v(r)}, {v(t1)}, 4, {v(r)}
s_lshl_b32 {s(sA)}, {s(sW)}, 14
s_add_u32 {s(sA)}, {s(sA)}, {WOS}
v_add_u32 {v(r)}, {s(sA)}, {v(r)}""")
def wo_read(b, r):
    for tt in range(16):
        for u in range(2):
            a(f"ds_read_b64_tr_b16 {ag(128+64*b+4*tt+2*u,2)}, {v(r)} offset:{tt*1024+u*256}")

lq, lp2x, lp2 = a.label("q"), a.label("p2x"), a.label("p2")
XR, XI, NX, WRr, WIr = 36, 44, 52, 60, 76
vU0, vU1 = 92, 93
a(f"""v_add_u32 {v(vU0)}, {s(sC)}, {v(vTR0)}
v_add_u32 {v(vU1)}, {s(sC)}, {v(vTR1)}
s_mov_b32 {s(sCNT)}, {SPIN_MAX}
s_cmp_lt_u32 {s(sW)}, 2
s_cbranch_scc0 {lp2x}""")
def x_reads():
    for c, ad in ((0, vU0), (1, vU1)):
        for k in range(2):
            for u in range(2):
                a(f"ds_read_b64_tr_b16 {v(XR+8*c+4*k+2*u,2)}, {v(ad)} offset:{k*2048+u*1024}")
a(f"""v_bfe_u32 v5, {v(vL)}, 2, 2
s_lshl_b32 {s(sA)}, {s(sE2)}, 1
s_add_u32 {s(sA)}, {s(sA)}, {s(sW)}
s_lshl_b32 {s(sA)}, {s(sA)}, 2
v_add_u32 v5, {s(sA)}, v5
v_sub_u32 v6, 32, v5
v_cmp_eq_u32 vcc, 0, v5
v_bfe_u32 v7, {v(vL)}, 1, 1
v_cndmask_b32 v6, v6, 16, vcc
v_cmp_eq_u32 vcc, 1, v7
v_and_b32 v7, 1, {v(vL)}
v_cndmask_b32 v5, v5, v6, vcc
v_lshl_add_u32 v5, v7, 5, v5
v_lshlrev_b32 v5, 1, v5
v_lshrrev_b32 v6, 4, {v(vL)}
v_lshl_add_u32 v5, v6, 9, v5
v_add_u32 v5, {WT}, v5""")
for c in range(2):
    for i in range(16):
        a(f"ds_read_u16 {v(WRr+16*c+i)}, v5 offset:{c*8192 + (16*(i>>2) + (i&3))*128}")
a("s_waitcnt lgkmcnt(15)")
for i in range(16):
    a(f"v_lshlrev_b32 {v(WRr+i)}, 16, {v(WRr+i)}")
a("s_waitcnt lgkmcnt(0)")
for i in range(16, 32):
    a(f"v_lshlrev_b32 {v(WRr+i)}, 16, {v(WRr+i)}")
lsp, lrt = a.label("spx"), a.label("rtx")
a(f"s_branch {lsp}\n{lrt}:")
x_issue()
a(f"{lsp}:\ns_waitcnt vmcnt(0)")
x_reads()
a(f"v_mov_b32 v6, 0\ns_waitcnt lgkmcnt(4)")
for i in range(8):
    a(f"v_bitop3_b32 v6, v6, {v(XR+i)}, {v(vTC)} bitop3:0xf6")
a("s_waitcnt lgkmcnt(0)")
for i in range(8):
    a(f"v_bitop3_b32 v6, v6, {v(XI+i)}, {v(vTC+1)} bitop3:0xf6")
spin_tail(lrt, 6, mask_v=vM)
a(f"s_branch {lp2}")
a(f"""{lp2x}:
s_lshl_b32 {s(sA)}, {s(sEXT)}, 2
s_add_u32 {s(sA)}, {s(sA)}, {s(sW)}
s_cmp_lg_u32 {s(sA)}, 6
s_cbranch_scc1 {lq}
v_lshlrev_b32 v4, 8, {v(vL)}
s_lshl_b32 {s(sB)}, {s(sK1)}, 3
s_add_u32 {s(sB)}, {s(sB)}, {XEOFF}""")
lsp = a.label("spe")
a(f"""{lsp}:
buffer_load_dwordx2 v[8:9], v4, {s(WS,4)}, {s(sB)} offen sc0 sc1
s_waitcnt vmcnt(0)
v_xor_b32 v6, {s(sT)}, v9""")
spin_tail(lsp, 6)
a(f"""v_lshlrev_b32 v5, 6, {v(vL)}
v_bfe_u32 v6, {v(vL)}, 2, 1
v_lshl_add_u32 v5, v6, 5, v5
v_add_u32 v5, {s(sC)}, v5
v_xor_b32 v6, 32, v5
ds_write_b16 v5, v8
ds_write_b16_d16_hi v6, v8
v_lshlrev_b32 v10, 16, {v(vEW)}
v_lshlrev_b32 v11, 16, {v(vEW+1)}
v_lshlrev_b32 v7, 2, {v(vL)}
v_add_u32 v7, {WE}, v7
ds_write_b32 v7, v10
ds_write_b32 v7, v11 offset:256
v_and_b32 v7, 48, {v(vL)}
v_add_u32 v7, {WE}, v7
s_waitcnt lgkmcnt(0)""")
for c in range(2):
    for b in range(4):
        a(f"ds_read_b128 {v(WRr+16*c+4*b,4)}, v7 offset:{c*256 + b*64}")
a("s_waitcnt lgkmcnt(0)")
x_reads()
a("s_waitcnt lgkmcnt(0)")
a(f"{lp2}:")
stamp()
wo_issue(0)
for i in range(8):
    a(f"v_xor_b32 {v(NX+i)}, 0x80008000, {v(XR+i)}")
FR, FI = 4, 20
for k in range(2):
    for b in range(4):
        mfma16(FR+4*b, v(PC+8*b+4*k,4), v(XR+4*k,4), "0" if k == 0 else v(FR+4*b,4))
        mfma16(FI+4*b, v(PC+8*b+4*k,4), v(XI+4*k,4), "0" if k == 0 else v(FI+4*b,4))
for b in range(4):
    for k in range(2):
        mfma16(FR+4*b, v(PS+8*b+4*k,4), v(XI+4*k,4), v(FR+4*b,4))
        mfma16(FI+4*b, v(PS+8*b+4*k,4), v(NX+4*k,4), v(FI+4*b,4))
YR, YI, NY = 36, 44, 52
for i in range(0, 16, 2):
    xr, xi, wr, wi = v(FR+i,2), v(FI+i,2), v(WRr+i,2), v(WIr+i,2)
    a(f"""v_pk_mul_f32 v[92:93], {xi}, {wi}
v_pk_mul_f32 v[94:95], {xi}, {wr}
v_pk_fma_f32 {xi}, {xr}, {wi}, v[94:95]
v_pk_fma_f32 {xr}, {xr}, {wr}, v[92:93] neg_lo:[0,0,1] neg_hi:[0,0,1]""")
    a(cvt(YI+i//2, FI+i, FI+i+1)); a(cvt(YR+i//2, FR+i, FR+i+1)); a(cvt(NY+i//2, FI+i, FI+i+1, True, True))
for k in range(2):
    for b in range(4):
        mfma16(FR+4*b, v(YR+4*k,4), v(PC+8*b+4*k,4), "0" if k == 0 else v(FR+4*b,4))
        mfma16(FI+4*b, v(YI+4*k,4), v(PC+8*b+4*k,4), "0" if k == 0 else v(FI+4*b,4))
a(f"""v_lshrrev_b32 v60, 4, {v(vL)}
v_lshlrev_b32 v61, 2, v60
v_lshrrev_b32_e64 v61, v61, {s(sT)}""")
for c in range(2):
    for d in range(2):
        a(f"v_bfe_u32 {v(64+2*c+d)}, v61, {16*c+2*d}, 2\nv_mul_u32_u24 {v(64+2*c+d)}, 0x8001, {v(64+2*c+d)}")
a(f"""v_and_b32 v61, 15, {v(vL)}
v_mul_u32_u24 v61, 80, v61
v_lshl_add_u32 v61, v60, 3, v61
v_add_u32 v61, {s(sC)}, v61
v_add_u32 v62, {s(sC)}, {v(vSTR)}
v_lshrrev_b32 v63, 2, {v(vL)}
v_lshlrev_b32 v63, 15, v63
v_and_b32 v60, 3, {v(vL)}
v_lshl_add_u32 v63, v60, 4, v63""")
for b in range(4):
    for k in range(2):
        mfma16(FR+4*b, v(NY+4*k,4), v(PS+8*b+4*k,4), v(FR+4*b,4))
        mfma16(FI+4*b, v(YR+4*k,4), v(PS+8*b+4*k,4), v(FI+4*b,4))
lxo = a.label("xout")
a(f"s_cmp_eq_u32 {s(sW)}, 2\ns_cbranch_scc1 {lxo}")
for b in range(4):
    for c in range(2):
        r = (FR, FI)[c] + 4*b; d = 68 + 4*b + 2*c
        a(cvt(d, r, r+1)); a(cvt(d+1, r+2, r+3))
        a(f"v_bfi_b32 {v(d)}, {v(vM)}, {v(64+2*c)}, {v(d)}\nv_bfi_b32 {v(d+1)}, {v(vM)}, {v(65+2*c)}, {v(d+1)}")
        a(f"ds_write_b64 v61, {v(d,2)} offset:{b*1280 + c*32}")
a("s_waitcnt lgkmcnt(0)")
for i in range(4):
    a(f"ds_read_b128 {v(36+4*i,4)}, v62 offset:{i*1280}")
a(f"s_add_u32 {s(sSO)}, {s(sUB)}, {XPOFF}")
for i in range(4):
    a(f"s_waitcnt lgkmcnt({3-i})\nbuffer_store_dwordx4 {v(36+4*i,4)}, v63, {s(WS,4)}, {s(sSO)} offen sc0 sc1")
    if i < 3:
        a(f"s_add_u32 {s(sSO)}, {s(sSO)}, {16*32768}")
lq2 = a.label("q2")
a(f"""s_branch {lq2}
{lxo}:
v_lshlrev_b32 v63, 8, {v(vL)}
s_lshl_b32 {s(sSO)}, {s(sK1)}, 3
s_add_u32 {s(sSO)}, {s(sSO)}, {XEPOFF}""")
for b in range(4):
    a(cvt(36+2*b, FR+4*b, FI+4*b)); a(f"v_mov_b32 {v(37+2*b)}, {s(sT)}")
a("s_mov_b64 exec, 0xffff")
for b in range(4):
    a(f"buffer_store_dwordx2 {v(36+2*b,2)}, v63, {s(WS,4)}, {s(sSO)} offen sc0 sc1")
    if b < 3:
        a(f"s_add_u32 {s(sSO)}, {s(sSO)}, 4096")
a(f"s_mov_b64 exec, -1\ns_branch {lq2}\n{lq}:")
wo_issue(0)
a(f"{lq2}:")
stamp()

a(f"""v_bfe_u32 v2, {v(vL)}, 2, 2
v_lshrrev_b32 v3, 5, {v(vL)}
v_lshl_add_u32 v2, v3, 3, v2
v_lshlrev_b32 v2, 6, v2
v_bfe_u32 v3, {v(vL)}, 4, 1
v_lshl_add_u32 v2, v3, 5, v2
v_and_b32 v3, 3, {v(vL)}
v_lshl_add_u32 v2, v3, 3, v2
v_add_u32 v2, {XT}, v2""")
DEPTH = 6
def qread(tt):
    for u in range(2):
        a(f"ds_read_b64_tr_b16 {v(36+4*(tt%8)+2*u,2)}, v2 offset:{tt*1024+u*256}")
for tt in range(DEPTH):
    qread(tt)
for tt in range(32):
    if tt + DEPTH < 32:
        qread(tt + DEPTH)
    a(f"s_waitcnt lgkmcnt({2*min(DEPTH, 31-tt)})")
    mfma32(4, v(36+4*(tt%8),4), ag(4*tt,4), "0" if tt == 0 else v(4,16))
wo_addr(94, 95)
phi(4, 20, 36)
a("s_waitcnt vmcnt(0)")
wo_read(0, 94)
stamp()

lg, lge = a.label("g"), a.label("ge")
a(f"""s_mov_b32 {s(sD)}, {s(sHEAD)}
s_cmp_ge_u32 {s(sD)}, {s(sHEND)}
s_cbranch_scc1 {lge}
{lg}:
s_lshl_b32 {s(sC)}, {s(sHP)}, 1
s_add_u32 {s(sC)}, {s(sC)}, {s(sD)}
s_mul_i32 {s(sC)}, {s(sC)}, {16*KVREC}
s_add_u32 {s(sC)}, {s(sC)}, {KVOFF}
v_lshrrev_b32 v2, 4, {v(vL)}
v_mul_u32_u24 v2, {KVREC}, v2
v_and_b32 v3, 15, {v(vL)}
v_lshl_add_u32 v2, v3, 2, v2
v_lshlrev_b32 v3, 1, v3
v_lshrrev_b32_e64 v3, v3, {s(sT)}
s_mov_b32 {s(sCNT)}, {SPIN_MAX}""")
lsp = a.label("spg")
a(f"{lsp}:\ns_mov_b32 {s(sSO)}, {s(sC)}")
for p in range(16):
    a(f"buffer_load_dwordx4 {v(28+4*p,4)}, {v(vL16)}, {s(WS,4)}, {s(sSO)} offen sc0 sc1")
    if p % 4 == 0:
        a(f"buffer_load_dword {v(4+p//4)}, v2, {s(WS,4)}, {s(sSO)} offen offset:1024 sc0 sc1")
    if p < 15:
        a(f"s_add_u32 {s(sSO)}, {s(sSO)}, {KVREC}")
a("v_mov_b32 v8, 0")
for p in range(16):
    rem = (15 - p) + sum(1 for q in range(p + 1, 16) if q % 4 == 0) + (1 if p % 4 == 0 else 0)
    a(f"s_waitcnt vmcnt({rem})")
    for j in range(4):
        a(f"v_bitop3_b32 v8, v8, {v(28+4*p+j)}, {v(vTO+j)} bitop3:0xf6")
    if p > 0:
        a(f"v_pk_add_f32 v[28:29], v[28:29], {v(28+4*p,2)}\nv_pk_add_f32 v[30:31], v[30:31], {v(30+4*p,2)}")
for j in range(4):
    a(f"v_bitop3_b32 v8, v8, {v(4+j)}, v3 bitop3:0xf6")
spin_tail(lsp, 8, mask_imm=3)
a(f"""v_add_f32 v4, v4, v5
v_add_f32 v6, v6, v7
v_add_f32 v4, v4, v6
{cvt(28, 28, 29)}
{cvt(29, 30, 31)}
v_mov_b32 v5, v4
s_mul_i32 {s(sA)}, {s(sD)}, 544
s_add_u32 {s(sA)}, {s(sA)}, {IMG}
v_permlane16_swap_b32 v4, v5
v_and_b32 v9, 15, {v(vL)}
v_lshlrev_b32 v9, 5, v9
v_add_f32 v4, v4, v5
v_bfe_u32 v10, {v(vL)}, 4, 1
v_lshl_add_u32 v9, v10, 4, v9
v_mov_b32 v5, v4
v_lshrrev_b32 v10, 5, {v(vL)}
v_lshl_add_u32 v9, v10, 3, v9
v_permlane32_swap_b32 v4, v5
v_add_u32 v9, {s(sA)}, v9
ds_write_b64 v9, v[28:29]
v_add_f32 v4, v4, v5
v_bfe_u32 v10, {v(vL)}, 2, 1
v_lshlrev_b32 v10, 4, v10
v_bfe_u32 v11, {v(vL)}, 3, 1
v_lshl_add_u32 v10, v11, 3, v10
v_and_b32 v11, 3, {v(vL)}
v_lshl_add_u32 v10, v11, 1, v10
v_add_u32 v10, {s(sA)}, v10
{cvt(4, 4, 4)}
ds_write_b16 v10, v4 offset:512
s_add_u32 {s(sD)}, {s(sD)}, 1
s_cmp_lt_u32 {s(sD)}, {s(sHEND)}
s_cbranch_scc1 {lg}
{lge}:""")
a(f"""v_bfe_u32 v2, {v(vL)}, 2, 1
v_lshlrev_b32 v2, 3, v2
v_bfe_u32 v3, {v(vL)}, 3, 1
v_lshl_add_u32 v2, v3, 2, v2
v_and_b32 v3, 3, {v(vL)}
v_add_u32 v2, v2, v3
v_lshlrev_b32 v2, 5, v2
v_bfe_u32 v3, {v(vL)}, 4, 1
v_cmp_eq_u32 vcc, 1, v3
v_lshrrev_b32 v3, 5, {v(vL)}
v_mov_b32 v28, 512
v_cndmask_b32 v2, v2, v28, vcc
v_lshl_add_u32 v2, v3, 4, v2
v_add_u32 v2, {IMG}, v2
s_waitcnt lgkmcnt(0)
s_barrier""")
stamp()
a(f"ds_read_b128 v[28:31], v2\nds_read_b128 v[32:35], v2 offset:544")
a(f"""s_lshl_b32 {s(sC)}, {s(sRB)}, 2
s_add_u32 {s(sC)}, {s(sC)}, {s(sW)}
s_lshl_b32 {s(sC)}, {s(sC)}, 4
s_add_u32 {s(sC)}, {s(sC)}, {s(sHP)}
s_lshl_b32 {s(sC)}, {s(sC)}, 11
s_add_u32 {s(sC)}, {s(sC)}, {OOFF}
s_mov_b32 {s(sB)}, {fl(1e-6)}
s_waitcnt lgkmcnt(1)""")
mfma32(36, v(28,4), v(20,4), "0")
a("s_waitcnt lgkmcnt(0)")
mfma32(52, v(32,4), v(24,4), "0")
for m in range(2):
    d = 36 + 16*m
    a(f"v_add_f32 {v(d+8)}, {s(sB)}, {v(d+8)}\nv_rcp_f32 {v(d+8)}, {v(d+8)}")
    for i in range(0, 8, 2):
        a(f"v_pk_mul_f32 {v(d+i,2)}, {v(d+i,2)}, {v(d+8,2)} op_sel_hi:[1,0]")
    for j in range(4):
        a(cvt(4+4*m+j, d+2*j, d+2*j+1))
        a(f"v_bfi_b32 {v(4+4*m+j)}, {v(vM)}, {v(vTO+j)}, {v(4+4*m+j)}")
    a(f"buffer_store_dwordx4 {v(4+4*m,4)}, {v(vL16)}, {s(WS,4)}, {s(sC)} offen offset:{1024*m} sc0 sc1")
stamp()
wo_issue(1)

a(f"""s_lshl_b32 {s(sC)}, {s(sW)}, 13
s_add_u32 {s(sC)}, {s(sC)}, {XT}
v_add_u32 {v(vU0)}, {s(sC)}, {v(vTR0)}
v_add_u32 {v(vU1)}, {s(sC)}, {v(vTR1)}
v_lshrrev_b32 v2, 2, {v(vL)}
v_lshlrev_b32 v2, 6, v2
v_bfe_u32 v3, {v(vL)}, 4, 1
v_lshlrev_b32 v3, 1, v3
v_and_b32 v12, 3, {v(vL)}
v_xor_b32 v3, v3, v12
v_lshl_add_u32 v2, v3, 4, v2
s_lshl_b32 {s(sD)}, {s(sSG)}, 15
s_lshl_b32 {s(sA)}, {s(sW)}, 13
s_add_u32 {s(sD)}, {s(sD)}, {s(sA)}
s_add_u32 {s(sD)}, {s(sD)}, {XPOFF}
s_mov_b32 {s(sCNT)}, {SPIN_MAX}""")
lsp = a.label("spp")
a(f"{lsp}:")
dma(2, WS, f"s_mov_b32 m0, {s(sC)}", f"s_mov_b32 {s(sSO)}, {s(sD)}", 8, 1024, 1024, "sc0 sc1")
a("s_waitcnt vmcnt(0)")
for jp in range(4):
    for c, ad in ((0, vU0), (1, vU1)):
        for u in range(2):
            a(f"ds_read_b64_tr_b16 {v(36+8*jp+4*c+2*u,2)}, {v(ad)} offset:{jp*2048+u*1024}")
a("v_mov_b32 v12, 0")
for jp in range(4):
    a(f"s_waitcnt lgkmcnt({12-4*jp})")
    mfma16(4+4*jp if False else 68+4*jp, v(36+8*jp,4), v(H3,4), "0")
    mfma16(68+4*jp, v(40+8*jp,4), v(H3+4,4), v(68+4*jp,4))
    for i in range(8):
        a(f"v_bitop3_b32 v12, v12, {v(36+8*jp+i)}, {v(vTC + i//4)} bitop3:0xf6")
spin_tail(lsp, 12, mask_v=vM)
stamp()
a(f"""s_lshl_b32 {s(sA)}, {s(sW)}, 2
v_lshrrev_b32 v2, 4, {v(vL)}
v_add_u32 v2, {s(sA)}, v2
v_sub_u32 v3, 32, v2
v_cmp_eq_u32 vcc, 0, v2
v_and_b32 v12, 7, {v(vL)}
v_mul_u32_u24 v12, 1040, v12
v_cndmask_b32 v3, v3, 16, vcc
v_bfe_u32 v13, {v(vL)}, 3, 1
v_lshl_add_u32 v12, v13, 9, v12
v_add_u32 v12, {E3}, v12
v_lshl_add_u32 v2, v2, 4, v12
v_lshl_add_u32 v3, v3, 4, v12""")
for jp in range(4):
    a(cvt(4+jp, 68+4*jp, 69+4*jp)); a(cvt(8+jp, 70+4*jp, 71+4*jp))
a("ds_write_b128 v2, v[4:7]\nds_write_b128 v3, v[8:11]")
lnx = a.label("nox3")
a(f"""s_cmp_lg_u32 {s(sW)}, 0
s_cbranch_scc1 {lnx}
v_and_b32 v14, 31, {v(vL)}
v_lshlrev_b32 v15, 3, v14
s_lshl_b32 {s(sB)}, {s(sSG)}, 8
s_add_u32 {s(sB)}, {s(sB)}, {XEPOFF}
s_mov_b32 {s(sCNT)}, {SPIN_MAX}""")
lsp = a.label("spz")
a(f"""{lsp}:
buffer_load_dwordx2 v[16:17], v15, {s(WS,4)}, {s(sB)} offen sc0 sc1
s_waitcnt vmcnt(0)
v_xor_b32 v18, {s(sT)}, v17""")
spin_tail(lsp, 18)
a(f"""v_lshlrev_b32 v15, 6, v14
v_bfe_u32 v18, v14, 2, 1
v_lshl_add_u32 v15, v18, 5, v15
v_add_u32 v15, {XET}, v15
v_xor_b32 v18, 32, v15
ds_write_b16 v15, v16
ds_write_b16_d16_hi v18, v16
v_add_u32 v15, {XET}, {v(vTR0)}
v_add_u32 v18, {XET}, {v(vTR1)}
s_waitcnt lgkmcnt(0)
ds_read_b64_tr_b16 v[20:21], v15
ds_read_b64_tr_b16 v[22:23], v15 offset:1024
ds_read_b64_tr_b16 v[24:25], v18
ds_read_b64_tr_b16 v[26:27], v18 offset:1024
v_lshlrev_b32 v15, 2, {v(vL)}
v_add_u32 v15, {Z256}, v15
s_waitcnt lgkmcnt(0)""")
mfma16(28, v(20,4), v(H3,4), "0")
mfma16(28, v(24,4), v(H3+4,4), v(28,4))
a(f"s_mov_b64 exec, 0xff\nds_write_b32 v15, v28\ns_mov_b64 exec, -1\n{lnx}:")
a(f"""s_mul_i32 {s(sA)}, {s(sW)}, 2080
s_add_u32 {s(sA)}, {s(sA)}, {E3}
v_add_u32 v2, {s(sA)}, {v(vL16)}
v_lshrrev_b32 v3, 5, {v(vL)}
s_lshl_b32 {s(sA)}, {s(sW)}, 3
s_add_u32 {s(sA)}, {s(sA)}, {Z256}
v_lshl_add_u32 v12, v3, 2, {s(sA)}
s_waitcnt lgkmcnt(0)
s_barrier
ds_read_b128 v[4:7], v2
ds_read_b128 v[8:11], v2 offset:1040
ds_read_b32 v13, v12
s_waitcnt lgkmcnt(2)""")
UR, UI, YA = 36, 52, 68
mfma32(UR, v(4,4), v(B2,4), "0")
mfma32(UI, v(4,4), v(B2+8,4), "0")
a("s_waitcnt lgkmcnt(1)")
mfma32(UR, v(8,4), v(B2+4,4), v(UR,16))
mfma32(UI, v(8,4), v(B2+12,4), v(UI,16))
a("s_waitcnt lgkmcnt(0)\nv_xor_b32 v14, 0x80000000, v13")
for i in range(16):
    a(f"v_mov_b32 {v(YA+i)}, {v(14 if i & 1 else 13)}")
a(f"""s_lshl_b32 {s(sA)}, {s(sQ)}, 2
s_add_u32 {s(sA)}, {s(sA)}, {s(sW)}
s_lshl_b32 {s(sA)}, {s(sA)}, 7
s_add_u32 {s(sA)}, {s(sA)}, {s(sSG)}
s_lshl_b32 {s(sC)}, {s(sA)}, 11
v_lshlrev_b32 v3, 17, v3
v_and_b32 v12, 31, {v(vL)}
v_lshl_add_u32 v3, v12, 5, v3""")
for i in range(0, 16, 2):
    ur, ui, tr, ti = v(UR+i,2), v(UI+i,2), v(TW+i,2), v(TW+16+i,2)
    a(f"""v_pk_mul_f32 v[92:93], {ui}, {ti}
v_pk_mul_f32 v[94:95], {ui}, {tr}
v_pk_fma_f32 {ui}, {ur}, {ti}, v[94:95]
v_pk_fma_f32 {ur}, {ur}, {tr}, v[92:93] neg_lo:[0,0,1] neg_hi:[0,0,1]""")
    a(cvt(20+i//2, UI+i, UI+i+1)); a(cvt(4+i//2, UR+i, UR+i+1))
mfma32(YA, v(4,4), v(B3,4), v(YA,16))
mfma32(YA, v(20,4), v(B3+8,4), v(YA,16))
mfma32(YA, v(8,4), v(B3+4,4), v(YA,16))
mfma32(YA, v(24,4), v(B3+12,4), v(YA,16))
wo_addr(94, 95)
a("s_waitcnt vmcnt(0)")
wo_read(1, 94)
for i in range(8):
    a(cvt(28+i, YA+2*i, YA+2*i+1))
a(f"buffer_store_dwordx4 v[28:31], v3, {s(OU,4)}, {s(sC)} offen\nbuffer_store_dwordx4 v[32:35], v3, {s(OU,4)}, {s(sC)} offen offset:16")
stamp()

a(f"""s_lshl_b32 {s(sD)}, {s(sRB32)}, 2
s_add_u32 {s(sD)}, {s(sD)}, {s(sW)}
s_lshl_b32 {s(sD)}, {s(sD)}, 13
s_add_u32 {s(sD)}, {s(sD)}, {OOFF}
s_add_u32 {s(sC)}, {s(sD)}, 4096
s_lshl_b32 {s(sA)}, {s(sW)}, 13
s_add_u32 {s(sA)}, {s(sA)}, {OT}
v_add_u32 v2, {s(sA)}, {v(vL16)}
v_add_u32 v3, {OT}, {v(vL16)}
s_mov_b32 {s(sCNT)}, {SPIN_MAX}""")
lsp = a.label("spo")
a(f"{lsp}:")
for i in range(8):
    a(f"buffer_load_dwordx4 {v(36+4*i,4)}, {v(vL16)}, {s(WS,4)}, {s(sD if i < 4 else sC)} offen offset:{(i%4)*1024} sc0 sc1")
a("v_mov_b32 v12, 0")
for i in range(8):
    a(f"s_waitcnt vmcnt({7-i})")
    a(f"ds_write_b128 v2, {v(36+4*i,4)} offset:{i*1024}")
    for j in range(4):
        a(f"v_bitop3_b32 v12, v12, {v(36+4*i+j)}, {v(vTO+j)} bitop3:0xf6")
spin_tail(lsp, 12, mask_v=vM)
a("s_waitcnt lgkmcnt(0)\ns_barrier")
stamp()
FD = 6
def oread(tt):
    a(f"ds_read_b128 {v(36+4*(tt%8),4)}, v3 offset:{tt*1024}")
for tt in range(FD):
    oread(tt)
for tt in range(32):
    if tt + FD < 32:
        oread(tt + FD)
    a(f"s_waitcnt lgkmcnt({min(FD, 31-tt)})")
    mfma32(4, ag(128+4*tt,4), v(36+4*(tt%8),4), "0" if tt == 0 else v(4,16))
    if tt == 0:
        a(f"""s_mul_i32 {s(sA)}, {s(sW)}, 2560
s_add_u32 {s(sA)}, {s(sA)}, {FST}
v_and_b32 v28, 31, {v(vL)}
v_mul_u32_u24 v28, 80, v28
v_lshrrev_b32 v29, 5, {v(vL)}
v_lshl_add_u32 v28, v29, 5, v28
v_add_u32 v28, {s(sA)}, v28
v_add_u32 v29, {s(sA)}, {v(vSTR)}
v_lshrrev_b32 v30, 2, {v(vL)}
v_lshlrev_b32 v30, 11, v30
v_and_b32 v31, 3, {v(vL)}
v_lshl_add_u32 v30, v31, 4, v30
s_lshl_b32 {s(sC)}, {s(sRB32)}, 16
s_lshl_b32 {s(sA)}, {s(sCB)}, 8
s_add_u32 {s(sC)}, {s(sC)}, {s(sA)}
s_lshl_b32 {s(sA)}, {s(sW)}, 6
s_add_u32 {s(sC)}, {s(sC)}, {s(sA)}
s_add_u32 {s(sC)}, {s(sC)}, 1024
s_add_u32 {s(sD)}, {s(sC)}, 32768""")
for i in range(8):
    a(cvt(20+i, 4+2*i, 5+2*i))
a(f"""ds_write_b128 v28, v[20:23]
ds_write_b128 v28, v[24:27] offset:16
s_waitcnt lgkmcnt(0)
ds_read_b128 v[36:39], v29
ds_read_b128 v[40:43], v29 offset:1280
s_waitcnt lgkmcnt(1)
buffer_store_dwordx4 v[36:39], v30, {s(OU,4)}, {s(sC)} offen
s_waitcnt lgkmcnt(0)
buffer_store_dwordx4 v[40:43], v30, {s(OU,4)}, {s(sD)} offen""")
lne = a.label("noe")
a(f"""s_add_u32 {s(sA)}, s2, {s(sW)}
s_cmp_lg_u32 {s(sA)}, 0
s_cbranch_scc1 {lne}
v_mov_b32 v2, {s(sE)}
v_mov_b32 v3, {EOFF}
s_mov_b64 exec, 1
buffer_store_dword v2, v3, {s(WS,4)}, 0 offen
s_mov_b64 exec, -1
{lne}:""")
if STAMPS:
    stamp()
    a("s_waitcnt vmcnt(0)")
    stamp()
    a(f"""s_lshl_b32 {s(sA)}, s2, 2
s_add_u32 {s(sA)}, {s(sA)}, {s(sW)}
s_lshl_b32 {s(sA)}, {s(sA)}, 8
s_add_u32 {s(sA)}, {s(sA)}, {STOFF}
v_lshlrev_b32 v2, 2, {v(vL)}
buffer_store_dword {v(vSTP)}, v2, {s(WS,4)}, {s(sA)} offen""")
a("L_end:\ns_endpgm")

head = open("concat_heads__spectral_gfnet__linear_attn_block__prompt.s.ref").read().split("; Override launch")[0]
txt = head + f"""; @launch grid=(256,1,1) block=(256,1,1) lds={LDS_BYTES}
.amdgcn_target "amdgcn-amd-amdhsa--gfx950"
.text
.globl {KNAME}
.p2align 8
.type {KNAME},@function
""" + a.finish() + f"""
.section .rodata,"a"
.p2align 6
.amdhsa_kernel {KNAME}
  .amdhsa_next_free_vgpr 512
  .amdhsa_next_free_sgpr 96
  .amdhsa_accum_offset 256
  .amdhsa_group_segment_fixed_size 0
  .amdhsa_kernarg_size 72
  .amdhsa_user_sgpr_count 2
  .amdhsa_user_sgpr_kernarg_segment_ptr 1
  .amdhsa_system_sgpr_workgroup_id_x 1
.end_amdhsa_kernel
"""
open(OUT, "w").write(txt)
print("wrote", OUT, "G ops", len(G), "per gap", per_gap, "stamps", nstamp[0])
```

```python
import sys
from asmlib import Asm

KNAME = "concat_heads__spectral_gfnet__linear_attn_block__prompt_kernel"
STAMPS = "--stamps" in sys.argv
OUT = [a for a in sys.argv[1:] if not a.startswith("--")]
OUT = OUT[0] if OUT else "kernel.s"
SPIN_MAX = 200000

XOFF, XPOFF, XEOFF, XEPOFF = 0, 0x200000, 0x400000, 0x410000
KVOFF, OOFF, EOFF, STOFF = 0x500000, 0x600000, 0x420000, 0x1000000
KVREC = 1152
SLOT = 24576
XT, E1 = 122880, 155648
S3 = XT
WOS = 0
WT, ZR, IMG, WE, Z256, XET = 73728, 90112, 90624, 91712, 92224, 92288
FST = WT
XTL, E3 = 98304, 113664
RED = E1
OT = XT
LDS_BYTES = 163840
AX, WR, WI, BX, WQ, WO, OU, WS = 24, 28, 32, 36, 40, 44, 48, 52
sW, sSG, sQ, sRB, sHP, sK1, sJP, sE2, sRB32, sCB = 56, 57, 58, 59, 60, 61, 62, 63, 64, 65
sT, sE, sCNT, sSO, sA, sB, sC, sD = 66, 67, 68, 69, 70, 71, 72, 73
sXB, sWB, sEXT, sHEAD, sHEND, sM0X, sM0W = 74, 75, 76, 77, 78, 79, 80
sTG = 82
sMK = 86
sSV = 88
sUB = 90
sST = 92
vL = 1
TW = 96
PC, PS = 128, 160
H3, B2, B3 = 192, 200, 216
vM = 232
vTO = 233
vTC = 237
vTR0, vTR1 = 239, 240
vL16 = 241
vSTR = 242
vXA = 243
vWK, vWV = 247, 248
vXD0, vXD1, vWD = 249, 250, 251
vEW = 252
vSTP = 254
vDUM = 255

a = Asm()

def v(i, n=1):
    return f"v{i}" if n == 1 else f"v[{i}:{i+n-1}]"
def ag(i, n=1):
    return f"a{i}" if n == 1 else f"a[{i}:{i+n-1}]"
def s(i, n=1):
    return f"s{i}" if n == 1 else f"s[{i}:{i+n-1}]"
def fl(x):
    import struct
    return "0x%08x" % struct.unpack("<I", struct.pack("<f", x))[0]

PROBE = [x for x in sys.argv if x.startswith("--probe=")]
PROBE = [int(y) for y in PROBE[0].split("=")[1].split(",")] if PROBE else None
nstamp = [0]
def stamp():
    if PROBE:
        i = nstamp[0]; nstamp[0] += 1
        if i == PROBE[1]: a("s_memrealtime s[96:97]\ns_waitcnt lgkmcnt(0)")
        if i == PROBE[2]: a("s_memrealtime s[98:99]\ns_waitcnt lgkmcnt(0)")
        return
    if not STAMPS:
        return
    i = nstamp[0]; nstamp[0] += 1
    a(f"s_memrealtime {s(sST,2)}\ns_memtime {s(sST+2,2)}\ns_waitcnt lgkmcnt(0)\nv_writelane_b32 {v(vSTP)}, {s(sST)}, {i}\nv_writelane_b32 {v(vSTP)}, {s(sST+2)}, {i+32}")

def srd(d, b, n):
    a(f"s_mov_b32 s{d}, s{b}\ns_mov_b32 s{d+1}, s{b+1}\ns_mov_b32 s{d+2}, {n}\ns_mov_b32 s{d+3}, 0x20000")

def mfma16(d, x, y, c):
    a(f"v_mfma_f32_16x16x32_bf16 {v(d,4)}, {x}, {y}, {c}")
def mfma32(d, x, y, c):
    a(f"v_mfma_f32_32x32x16_bf16 {v(d,16)}, {x}, {y}, {c}")
def cvt(d, x, y, nx=False, ny=False):
    return f"v_cvt_pk_bf16_f32 {v(d)}, {'-' if nx else ''}{v(x)}, {'-' if ny else ''}{v(y)}"

def dma(voff, rs, lds_first, so_first, n, lds_step, so_step, flags=""):
    for i in range(n):
        if i == 0:
            a(lds_first); a(so_first)
        else:
            a(f"s_add_u32 m0, m0, {lds_step}\ns_add_u32 {s(sSO)}, {s(sSO)}, {so_step}")
        a(f"buffer_load_dwordx4 {v(voff)}, {s(rs,4)}, {s(sSO)} offen {flags} lds".replace("  ", " "))

def spin_tail(lab, acc, mask_v=None, mask_imm=None):
    done = a.label("ok")
    if mask_v is not None:
        a(f"v_and_b32 {v(acc)}, {v(mask_v)}, {v(acc)}")
    elif mask_imm is not None:
        a(f"v_and_b32 {v(acc)}, {mask_imm}, {v(acc)}")
    a(f"v_cmp_ne_u32 vcc, 0, {v(acc)}\ns_cbranch_vccz {done}\ns_sub_u32 {s(sCNT)}, {s(sCNT)}, 1\ns_cmp_lg_u32 {s(sCNT)}, 0\ns_cbranch_scc1 {lab}\n{done}:")

a(f"{KNAME}:")
a(f"s_cmp_ge_u32 s2, 256\ns_cbranch_scc1 L_end")
if PROBE and PROBE[1] < 0:
    a("s_memrealtime s[96:97]")
a("s_load_dwordx16 s[4:19], s[0:1], 0\ns_load_dwordx2 s[20:21], s[0:1], 64")
a("s_getpc_b64 s[22:23]\nL_pc:")
if STAMPS:
    a(f"v_mov_b32 {v(vSTP)}, 0")
a(f"""v_lshlrev_b32 v2, 7, v0
v_min_u32 v2, L_end-L_pc, v2
global_load_dword {v(vDUM)}, v2, s[22:23]
v_and_b32 {v(vL)}, 63, v0
v_lshrrev_b32 v3, 6, v0
v_lshlrev_b32 {v(vL16)}, 4, {v(vL)}
v_readfirstlane_b32 {s(sW)}, v3
s_and_b32 {s(sA)}, s2, 7
s_lshr_b32 {s(sB)}, s2, 3
s_lshr_b32 {s(sC)}, {s(sB)}, 2
s_and_b32 {s(sQ)}, {s(sB)}, 3
s_lshl_b32 {s(sSG)}, {s(sC)}, 3
s_add_u32 {s(sSG)}, {s(sSG)}, {s(sA)}
s_lshr_b32 {s(sRB)}, {s(sA)}, 1
s_lshl_b32 {s(sRB)}, {s(sRB)}, 2
s_add_u32 {s(sRB)}, {s(sRB)}, {s(sQ)}
s_and_b32 {s(sHP)}, {s(sA)}, 1
s_lshl_b32 {s(sHP)}, {s(sHP)}, 3
s_add_u32 {s(sHP)}, {s(sHP)}, {s(sC)}
s_lshl_b32 {s(sRB32)}, {s(sA)}, 3
s_add_u32 {s(sRB32)}, {s(sRB32)}, {s(sC)}
s_mov_b32 {s(sCB)}, {s(sQ)}
s_and_b32 {s(sE2)}, {s(sB)}, 1
s_bfe_u32 {s(sK1)}, {s(sB)}, 0x10001
s_lshl_b32 {s(sD)}, {s(sA)}, 1
s_add_u32 {s(sK1)}, {s(sK1)}, {s(sD)}
s_bfe_u32 {s(sD)}, {s(sB)}, 0x10002
s_lshl_b32 {s(sD)}, {s(sD)}, 4
s_add_u32 {s(sK1)}, {s(sK1)}, {s(sD)}
s_lshr_b32 {s(sJP)}, {s(sB)}, 3""")
a(f"""v_lshrrev_b32 v4, 3, {v(vL)}
v_and_b32 v5, 7, {v(vL)}
v_lshrrev_b32 v6, 4, {v(vL)}
v_xor_b32 v7, v5, v6
v_lshlrev_b32 v7, 4, v7
v_lshl_add_u32 {v(vXD0)}, v4, 10, v7
v_xor_b32 {v(vXD1)}, 64, {v(vXD0)}
v_mul_u32_u24 v8, 3072, v4
v_and_b32 v9, 3, {v(vL)}
v_lshl_add_u32 v8, v9, 4, v8
v_lshrrev_b32 v10, 2, v5
v_xor_b32 v10, v10, v6
v_and_b32 v10, 1, v10
v_lshlrev_b32 v10, 10, v10
v_add_u32 v8, 1024, v8
v_add_u32 {v(vWD)}, v8, v10
s_lshl_b32 {s(sA)}, {s(sW)}, 19
s_lshl_b32 {s(sB)}, {s(sSG)}, 10
s_add_u32 {s(sA)}, {s(sA)}, {s(sB)}
s_lshl_b32 {s(sB)}, {s(sW)}, 13
s_add_u32 {s(sB)}, {s(sB)}, {XT}
s_lshl_b32 {s(sXB)}, {s(sRB)}, 17
s_lshl_b32 {s(sC)}, {s(sW)}, 15
s_add_u32 {s(sXB)}, {s(sXB)}, {s(sC)}
s_mul_i32 {s(sWB)}, {s(sW)}, {16*3072}
s_lshl_b32 {s(sC)}, {s(sHP)}, 6
s_add_u32 {s(sWB)}, {s(sWB)}, {s(sC)}
s_lshl_b32 {s(sM0X)}, {s(sW)}, 12
s_lshl_b32 {s(sM0W)}, {s(sW)}, 11
s_add_u32 {s(sM0W)}, {s(sM0W)}, 16384
s_waitcnt lgkmcnt(0)""")
stamp()
srd(AX, 4, 2097152)
dma(vL16, AX, f"s_mov_b32 m0, {s(sB)}", f"s_mov_b32 {s(sSO)}, {s(sA)}", 8, 1024, 65536)
tokXT = a.tok()
srd(BX, 10, 2097152)
srd(WQ, 12, 1572864)
a(f"s_add_u32 s22, s20, {EOFF}\ns_addc_u32 s23, s21, 0\ns_load_dword {s(sE)}, s[22:23], 0")

tokC = {}
def issue_chunk(c):
    sl = (c % 5) * SLOT
    for i in range(4):
        a(f"s_add_u32 m0, {s(sM0X)}, {sl + i*1024}\ns_add_u32 {s(sSO)}, {s(sXB)}, {i*8192 + c*128}")
        a(f"buffer_load_dwordx4 {v(vXD1 if i & 1 else vXD0)}, {s(BX,4)}, {s(sSO)} offen lds")
    for i in range(2):
        a(f"s_add_u32 m0, {s(sM0W)}, {sl + i*1024}\ns_add_u32 {s(sSO)}, {s(sWB)}, {(64*c + 8*i)*3072}")
        a(f"buffer_load_dwordx4 {v(vWD)}, {s(WQ,4)}, {s(sSO)} offen lds")
    tokC[c] = a.tok()
for c in range(5):
    issue_chunk(c)
stamp()
srd(WR, 6, 1052672)
srd(WI, 8, 1052672)
srd(WO, 14, 524288)
srd(OU, 16, 4194304)
srd(WS, 20, 268435456)

RB0, RB1, GRE, GIM, GC, GS, GN = 96, 100, 104, 108, 112, 120, 128
T0 = 140
a(f"""v_and_b32 v2, 15, {v(vL)}
v_lshrrev_b32 v3, 4, {v(vL)}
v_bfe_u32 v4, v2, 1, 2
s_lshl_b32 {s(sA)}, {s(sQ)}, 2
v_add_u32 v4, {s(sA)}, v4
v_and_b32 v5, 1, v2
v_cvt_f32_u32 v6, v4
v_mul_f32 v6, {fl(1/32)}, v6
v_cvt_f32_u32 v7, v5
v_mul_f32 v7, {fl(0.25)}, v7
v_cmp_eq_u32 vcc, 0, v4
v_cmp_eq_u32 {s(sSV,2)}, 1, v5
s_and_b64 vcc, vcc, {s(sSV,2)}
v_cndmask_b32 v6, v6, 0.5, vcc
v_cndmask_b32 v7, v7, 0, vcc
v_lshlrev_b32 v8, 2, v3
v_cvt_f32_u32 v8, v8
v_fma_f32 v9, v8, v6, v7""")
for j in range(8):
    d = j if j < 4 else 12 + j
    a(f"v_fma_f32 {v(T0+j)}, v6, {float(d) if d in (0,1,2,4) else d}, v9" if False else
      f"v_mov_b32 v10, {fl(float(d))}\nv_fma_f32 {v(T0+j)}, v6, v10, v9")
for j in range(8):
    a(f"v_cos_f32 {v(T0+j)}, {v(T0+j)}")
a(f"v_cmp_gt_u32 vcc, 8, v2")
for j in range(4):
    a(cvt(T0+8+j, T0+2*j, T0+2*j+1))
for j in range(4):
    a(f"v_cndmask_b32 {v(RB0+j)}, 0, {v(T0+8+j)}, vcc\nv_cndmask_b32 {v(RB1+j)}, {v(T0+8+j)}, 0, {s(sSV,2)}".split("\n")[0])
    a(f"v_xor_b32 {v(RB1+j)}, {v(RB0+j)}, {v(T0+8+j)}")
a(f"""s_lshl_b32 {s(sA)}, {s(sQ)}, 2
s_add_u32 {s(sA)}, {s(sA)}, {s(sW)}
s_sub_u32 {s(sB)}, 32, {s(sA)}
s_cmp_eq_u32 {s(sA)}, 0
s_cselect_b32 {s(sB)}, 16, {s(sB)}
s_cselect_b64 {s(sMK,2)}, -1, 0
v_lshrrev_b32 v4, 2, v2
v_and_b32 v5, 1, v2
v_lshl_add_u32 v4, v4, 1, v5
v_lshlrev_b32 v4, 5, v4
v_bfe_u32 v5, v2, 1, 1
v_mov_b32 v6, {s(sA)}
v_mov_b32 v7, {s(sB)}
v_cmp_eq_u32 vcc, 1, v5
v_lshrrev_b32 v8, 1, v3
v_cvt_f32_u32 v10, v5
v_cndmask_b32 v6, v6, v7, vcc
v_add_u32 v4, v4, v6
v_cvt_f32_u32 v4, v4
v_mul_f32 v4, {fl(1/512)}, v4
v_cvt_f32_u32 v9, v8
v_fma_f32 v10, v10, 0.5, {'-0.5'}
v_add_f32 v10, {fl(0.25)}, v10
v_mul_f32 v10, v10, v9
v_cndmask_b32 v10, v10, 0, {s(sMK,2)}
v_cmp_ne_u32 vcc, v5, v8
s_and_b64 vcc, vcc, {s(sMK,2)}
v_mov_b32 v11, {fl(2.0**-19)}
v_cndmask_b32 v11, v11, 0, vcc
v_cmp_eq_u32 vcc, 0, v2
s_and_b64 vcc, vcc, {s(sMK,2)}
v_mul_f32 v12, 0.5, v11
v_cndmask_b32 v11, v11, v12, vcc
v_cndmask_b32 v13, v4, 0.5, vcc
v_add_f32 v14, {fl(0.25)}, v10
v_cndmask_b32 v14, v14, 0, vcc
v_and_b32 v15, 1, v3
v_lshlrev_b32 v15, 1, v15
v_xor_b32 v16, {s(sW)}, v15
v_xor_b32 v17, 1, v16
v_lshlrev_b32 v16, 2, v16
v_lshlrev_b32 v17, 2, v17
v_cvt_f32_u32 v16, v16
v_cvt_f32_u32 v17, v17""")
for j in range(8):
    a(f"v_add_f32 v18, {float(j & 3) if (j & 3) != 3 else fl(3.0)}, {v(16 if j < 4 else 17)}")
    a(f"v_fma_f32 {v(T0+j)}, v18, v4, v10\nv_fma_f32 {v(T0+8+j)}, v18, v13, v14")
for j in range(16):
    a(f"v_cos_f32 {v(T0+j)}, {v(T0+j)}")
for j in range(16):
    a(f"v_mul_f32 {v(T0+j)}, v11, {v(T0+j)}")
for j in range(4):
    a(cvt(GRE+j, T0+2*j, T0+2*j+1)); a(cvt(GIM+j, T0+8+2*j, T0+8+2*j+1))
a(f"""v_lshlrev_b32 v4, 9, v3
v_add_u32 v4, {s(sSG)}, v4
v_cvt_f32_u32 v4, v4
v_mul_f32 v4, {fl(1/2048)}, v4
v_cvt_f32_u32 v5, v2
v_add_f32 v6, {fl(16.0)}, v5""")
for b in range(2):
    for j in range(8):
        a(f"v_add_f32 v7, {fl(j/32)}, v4\nv_mul_f32 {v(T0+j)}, v7, {v(5+b)}")
    for j in range(8):
        a(f"v_sin_f32 {v(T0+8+j)}, {v(T0+j)}\nv_cos_f32 {v(T0+j)}, {v(T0+j)}")
    for j in range(4):
        a(cvt(GC+4*b+j, T0+2*j, T0+2*j+1))
        a(cvt(GS+4*b+j, T0+8+2*j, T0+8+2*j+1))
        a(cvt(GN+4*b+j, T0+8+2*j, T0+8+2*j+1, True, True))
vA1, vA2, vA3, vA4, vA5 = 60, 61, 62, 63, 64
a(f"""s_lshl_b32 {s(sA)}, {s(sW)}, 13
s_add_u32 {s(sA)}, {s(sA)}, {XT}
v_lshl_add_u32 {v(vA1)}, {v(vL)}, 3, {s(sA)}
v_bfe_u32 v4, v2, 1, 2
v_xor_b32 v5, v3, v4
v_lshlrev_b32 v5, 3, v5
v_lshl_add_u32 v5, v4, 11, v5
v_and_b32 v6, 1, v2
v_lshl_add_u32 v5, v6, 5, v5
v_lshrrev_b32 v6, 3, v2
v_lshl_add_u32 v5, v6, 6, v5
s_lshl_b32 {s(sA)}, {s(sW)}, 9
s_add_u32 {s(sA)}, {s(sA)}, {E1}
v_add_u32 {v(vA2)}, {s(sA)}, v5
v_lshrrev_b32 v4, 2, v2
v_lshlrev_b32 v4, 9, v4
v_and_b32 v5, 3, v2
v_lshl_add_u32 v4, v5, 6, v4
v_lshl_add_u32 v4, v3, 4, v4
s_lshl_b32 {s(sA)}, {s(sW)}, 11
s_add_u32 {s(sA)}, {s(sA)}, {E1}
v_add_u32 {v(vA3)}, {s(sA)}, v4
v_lshl_add_u32 v4, v3, 5, v2
v_mul_u32_u24 v4, 80, v4
s_lshl_b32 {s(sA)}, {s(sW)}, 3
s_add_u32 {s(sA)}, {s(sA)}, {S3}
v_add_u32 {v(vA4)}, {s(sA)}, v4
v_lshrrev_b32 v4, 2, {v(vL)}
v_mul_u32_u24 v4, 80, v4
v_and_b32 v5, 3, {v(vL)}
v_lshl_add_u32 {v(vSTR)}, v5, 4, v4
s_mul_i32 {s(sA)}, {s(sW)}, 2560
s_add_u32 {s(sA)}, {s(sA)}, {S3}
v_add_u32 {v(vA5)}, {s(sA)}, {v(vSTR)}
v_mov_b32 {v(vM)}, 0x00010001
s_waitcnt lgkmcnt(0)
s_add_u32 {s(sE)}, {s(sE)}, 1
s_and_b32 {s(sT)}, {s(sE)}, 0xff
s_mul_i32 {s(sT)}, {s(sT)}, 0x01010101
s_xor_b32 {s(sT)}, {s(sT)}, 0x8e592b00
s_lshl_b32 {s(sA)}, {s(sW)}, 2
s_lshr_b32 {s(sA)}, {s(sT)}, {s(sA)}""")
for c in range(2):
    for d in range(2):
        a(f"s_bfe_u32 {s(sTG+2*c+d)}, {s(sA)}, {0x20000 + 16*c + 2*d}\ns_mul_i32 {s(sTG+2*c+d)}, {s(sTG+2*c+d)}, 0x8001")

stamp()
a.wait_vm(tokXT)
stamp()
for r in range(8):
    a(f"ds_read_b64_tr_b16 {v(4+4*r,2)}, {v(vA1)} offset:{r*1024}\nds_read_b64_tr_b16 {v(6+4*r,2)}, {v(vA1)} offset:{r*1024+512}")
for p in range(4):
    a(f"s_waitcnt lgkmcnt({12-4*p})")
    mfma16(36+4*p, v(4+8*p,4), v(RB0,4), "0")
    mfma16(36+4*p, v(8+8*p,4), v(RB1,4), v(36+4*p,4))
for p in range(4):
    a(cvt(52+2*p, 36+4*p, 37+4*p)); a(cvt(53+2*p, 38+4*p, 39+4*p))
    a(f"ds_write_b64 {v(vA2)}, {v(52+2*p,2)} offset:{p*128}")
a("s_waitcnt lgkmcnt(0)\ns_barrier")
a(f"ds_read_b128 {v(4,4)}, {v(vA3)}\nds_read_b128 {v(8,4)}, {v(vA3)} offset:256")
a("s_waitcnt lgkmcnt(1)")
mfma16(12, v(4,4), v(GRE,4), "0"); mfma16(20, v(4,4), v(GIM,4), "0")
a("s_waitcnt lgkmcnt(0)")
mfma16(16, v(8,4), v(GRE,4), "0"); mfma16(24, v(8,4), v(GIM,4), "0")
for j in range(4):
    a(cvt(28+j, 12+2*j, 13+2*j))
for j in range(4):
    a(cvt(32+j, 20+2*j, 21+2*j))
lab = a.label("nox")
a(f"s_add_u32 {s(sA)}, {s(sQ)}, {s(sW)}\ns_cmp_lg_u32 {s(sA)}, 0\ns_cbranch_scc1 {lab}")
for b in range(2):
    mfma16(36+8*b, v(32,4), v(GC+4*b,4), "0"); mfma16(40+8*b, v(32,4), v(GN+4*b,4), "0")
a(f"""v_cmp_ne_u32 vcc, 0, v2
s_lshl_b32 {s(sA)}, {s(sSG)}, 8
s_add_u32 {s(sA)}, {s(sA)}, {XEOFF}
v_lshlrev_b32 v56, 3, {v(vL)}
v_mov_b32 v53, {s(sT)}
v_mov_b32 v55, {s(sT)}""")
for j in range(4):
    a(f"v_cndmask_b32 {v(32+j)}, 0, {v(32+j)}, vcc")
a(cvt(52, 36, 40)); a(cvt(54, 44, 48))
a(f"""s_mov_b64 exec, 0xffff
buffer_store_dwordx2 v[52:53], v56, {s(WS,4)}, {s(sA)} offen sc0 sc1
buffer_store_dwordx2 v[54:55], v56, {s(WS,4)}, {s(sA)} offen offset:128 sc0 sc1
s_mov_b64 exec, -1""")
a.vm = a.vm[:-2]
a(f"{lab}:")
for b in range(2):
    mfma16(36+8*b, v(28,4), v(GC+4*b,4), "0"); mfma16(40+8*b, v(32,4), v(GC+4*b,4), "0")
for b in range(2):
    mfma16(36+8*b, v(32,4), v(GS+4*b,4), v(36+8*b,4)); mfma16(40+8*b, v(28,4), v(GN+4*b,4), v(40+8*b,4))
for b in range(2):
    for c in range(2):
        r = 36 + 8*b + 4*c; d = 4 + 4*b + 2*c
        a(cvt(d, r, r+1)); a(cvt(d+1, r+2, r+3))
        a(f"v_bfi_b32 {v(d)}, {v(vM)}, {s(sTG+2*c)}, {v(d)}\nv_bfi_b32 {v(d+1)}, {v(vM)}, {s(sTG+2*c+1)}, {v(d+1)}")
        a(f"ds_write_b64 {v(vA4)}, {v(d,2)} offset:{b*1280 + c*32}")
a("s_waitcnt lgkmcnt(0)\ns_barrier")
a(f"ds_read_b128 {v(12,4)}, {v(vA5)}\nds_read_b128 {v(16,4)}, {v(vA5)} offset:1280")
a(f"""s_lshl_b32 {s(sA)}, {s(sSG)}, 15
s_lshl_b32 {s(sB)}, {s(sQ)}, 13
s_add_u32 {s(sA)}, {s(sA)}, {s(sB)}
s_lshl_b32 {s(sB)}, {s(sW)}, 11
s_add_u32 {s(sA)}, {s(sA)}, {s(sB)}
s_waitcnt lgkmcnt(1)
buffer_store_dwordx4 {v(12,4)}, {v(vL16)}, {s(WS,4)}, {s(sA)} offen sc0 sc1
s_waitcnt lgkmcnt(0)
buffer_store_dwordx4 {v(16,4)}, {v(vL16)}, {s(WS,4)}, {s(sA)} offen offset:1024 sc0 sc1""")
stamp()

G = []
def g(text):
    G.extend(x for x in text.split("\n") if x.strip())
t = 68
g(f"""v_and_b32 {v(t)}, 15, {v(vL)}
v_lshrrev_b32 {v(t+1)}, 4, {v(vL)}
v_cvt_f32_u32 {v(t+2)}, {v(t)}
v_mul_f32 {v(t+2)}, {fl(1/64)}, {v(t+2)}
v_lshlrev_b32 {v(t+3)}, 2, {v(t+1)}
v_cvt_f32_u32 {v(t+3)}, {v(t+3)}
v_and_b32 {v(t+4)}, 1, {v(t)}
v_mul_u32_u24 {v(t+4)}, 0x8000, {v(t+4)}
v_lshl_or_b32 {v(t+4)}, {v(t+4)}, 16, {v(t+4)}""")
cs = t + 8
for j in range(8):
    d = j if j < 4 else 12 + j
    g(f"v_add_f32 {v(t+5)}, {fl(float(d))}, {v(t+3)}\nv_mul_f32 {v(cs+j)}, {v(t+5)}, {v(t+2)}")
for j in range(8):
    g(f"v_sin_f32 {v(cs+8+j)}, {v(cs+j)}\nv_cos_f32 {v(cs+j)}, {v(cs+j)}")
def rot(j, blk, want_sin):
    tt = (blk * (j & 3) + (3 if want_sin else 0)) & 3
    return [(cs+j, False), (cs+8+j, True), (cs+j, True), (cs+8+j, False)][tt]
for blk in range(4):
    for base, ws_ in ((PC, False), (PS, True)):
        for jj in range(4):
            (r0, n0), (r1, n1) = rot(2*jj, blk, ws_), rot(2*jj+1, blk, ws_)
            d = base + 8*blk + jj
            g(cvt(d, r0, r1, n0, n1))
            g(f"v_xor_b32 {v(d+4)}, {v(t+4)}, {v(d)}")
g(f"""v_and_b32 {v(t+2)}, 7, {v(vL)}
s_lshl_b32 {s(sD)}, {s(sQ)}, 3
v_add_u32 {v(t+2)}, {s(sD)}, {v(t+2)}
v_lshlrev_b32 {v(t+2)}, 6, {v(t+2)}
v_add_u32 {v(t+2)}, {s(sSG)}, {v(t+2)}
v_cvt_f32_u32 {v(t+2)}, {v(t+2)}
v_mul_f32 {v(t+2)}, {fl(1/2048)}, {v(t+2)}
v_bfe_u32 {v(t+4)}, {v(vL)}, 3, 1
v_cvt_f32_u32 {v(t+4)}, {v(t+4)}
v_mul_f32 {v(t+4)}, {fl(-0.25)}, {v(t+4)}""")
for j in range(8):
    d = j if j < 4 else 12 + j
    g(f"v_add_f32 {v(t+5)}, {fl(float(d))}, {v(t+3)}\nv_fma_f32 {v(cs+j)}, {v(t+5)}, {v(t+2)}, {v(t+4)}")
for j in range(8):
    g(f"v_sin_f32 {v(cs+8+j)}, {v(cs+j)}\nv_cos_f32 {v(cs+j)}, {v(cs+j)}")
for jj in range(4):
    g(cvt(H3+jj, cs+2*jj, cs+2*jj+1)); g(cvt(H3+4+jj, cs+8+2*jj, cs+8+2*jj+1, True, True))
g(f"""v_bfe_u32 {v(t)}, {v(vL)}, 3, 2
v_and_b32 {v(t+1)}, 3, {v(vL)}
v_lshl_add_u32 {v(t)}, {v(t)}, 2, {v(t+1)}
v_cvt_f32_u32 {v(t)}, {v(t)}
v_lshrrev_b32 {v(t+1)}, 5, {v(vL)}
v_cvt_f32_u32 {v(t+1)}, {v(t+1)}
v_mul_f32 {v(t+2)}, {fl(1/16)}, {v(t)}
v_mul_f32 {v(t+3)}, {fl(0.25)}, {v(t+1)}
v_bfe_i32 {v(t+4)}, {v(vL)}, 2, 1""")
for j in range(8):
    g(f"v_mov_b32 {v(t+5)}, {fl(float(j))}\nv_fma_f32 {v(cs+j)}, {v(t+5)}, {v(t+2)}, {v(t+3)}")
for j in range(8):
    g(f"v_sin_f32 {v(cs+8+j)}, {v(cs+j)}\nv_cos_f32 {v(cs+j)}, {v(cs+j)}")
for k in range(2):
    for jj in range(4):
        d = B2 + 8*k + jj
        g(cvt(d, cs+8*k+2*jj, cs+8*k+2*jj+1))
        g(f"v_and_b32 {v(d+4)}, {v(t+4)}, {v(d)}\nv_xor_b32 {v(d)}, {v(d+4)}, {v(d)}")
g(f"v_mul_f32 {v(t+2)}, {fl(1/512)}, {v(t)}\nv_mul_f32 {v(t+3)}, 4.0, {v(t+1)}")
for i in range(16):
    f1 = 8*(i >> 2) + (i & 3)
    g(f"v_add_f32 {v(t+5)}, {fl(float(f1))}, {v(t+3)}\nv_mul_f32 {v(TW+i)}, {v(t+5)}, {v(t+2)}")
    g(f"v_sin_f32 {v(TW+16+i)}, {v(TW+i)}\nv_cos_f32 {v(TW+i)}, {v(TW+i)}")
g(f"""v_and_b32 {v(t)}, 31, {v(vL)}
v_cvt_f32_u32 {v(t+2)}, {v(t)}
v_mul_f32 {v(t+2)}, {fl(1/32)}, {v(t+2)}
v_and_b32 {v(t+4)}, 1, {v(t)}
v_mul_u32_u24 {v(t+4)}, 0x8000, {v(t+4)}
v_lshl_or_b32 {v(t+4)}, {v(t+4)}, 16, {v(t+4)}""")
for j in range(8):
    f1 = 8*(j >> 2) + (j & 3)
    g(f"v_add_f32 {v(t+5)}, {fl(float(f1))}, {v(t+3)}\nv_mul_f32 {v(cs+j)}, {v(t+5)}, {v(t+2)}")
for j in range(8):
    g(f"v_sin_f32 {v(cs+8+j)}, {v(cs+j)}\nv_cos_f32 {v(cs+j)}, {v(cs+j)}")
for k in range(2):
    for jj in range(4):
        d = B3 + 8*k + jj
        g(cvt(d, cs+8*k+2*jj, cs+8*k+2*jj+1, k == 1, k == 1))
        g(f"v_xor_b32 {v(d+4)}, {v(t+4)}, {v(d)}")
g(f"""v_and_b32 {v(t)}, 3, {v(vL)}
v_lshlrev_b32 {v(t+1)}, 3, {v(t)}
v_lshrrev_b32 {v(t+1)}, {v(t+1)}, {s(sT)}""".replace(f"v_lshrrev_b32 {v(t+1)}, {v(t+1)}, {s(sT)}", f"v_lshrrev_b32_e64 {v(t+1)}, {v(t+1)}, {s(sT)}"))
for j in range(4):
    g(f"v_bfe_u32 {v(vTO+j)}, {v(t+1)}, {2*j}, 2\nv_mul_u32_u24 {v(vTO+j)}, 0x8001, {v(vTO+j)}")
g(f"""v_and_b32 {v(t+2)}, 15, {v(vL)}
v_lshrrev_b32_e64 {v(t+2)}, {v(t+2)}, {s(sT)}
v_bfe_i32 {v(vTC)}, {v(t+2)}, 0, 1
v_bfe_i32 {v(vTC+1)}, {v(t+2)}, 16, 1
v_lshrrev_b32 {v(t+2)}, 2, {v(vL)}
v_lshlrev_b32 {v(t+2)}, 6, {v(t+2)}
v_lshl_add_u32 {v(t+2)}, {v(t)}, 3, {v(t+2)}
v_bfe_u32 {v(t+3)}, {v(vL)}, 4, 1
v_lshl_add_u32 {v(vTR0)}, {v(t+3)}, 5, {v(t+2)}
v_xor_b32 {v(vTR1)}, 32, {v(vTR0)}""")
gpos = [0]
def fill(n):
    for _ in range(n):
        if gpos[0] < len(G):
            a(G[gpos[0]]); gpos[0] += 1

a(f"""v_and_b32 v4, 31, {v(vL)}
v_lshrrev_b32 v5, 5, {v(vL)}
v_bfe_u32 v6, v4, 1, 3
v_xor_b32 v6, v6, v5
v_lshlrev_b32 v7, 7, v4
v_add_u32 v7, {s(sM0X)}, v7""")
for tt in range(4):
    a(f"v_xor_b32 v8, {2*tt}, v6\nv_lshl_add_u32 {v(vXA+tt)}, v8, 4, v7")
a(f"""v_bfe_u32 v6, {v(vL)}, 2, 2
v_lshl_add_u32 v7, v5, 3, v6
v_lshlrev_b32 v7, 7, v7
v_lshrrev_b32 v6, 1, v6
v_lshl_add_u32 v7, v6, 6, v7
v_bfe_u32 v6, {v(vL)}, 4, 1
v_lshl_add_u32 v7, v6, 5, v7
v_and_b32 v6, 3, {v(vL)}
v_lshl_add_u32 v7, v6, 3, v7
v_add_u32 {v(vWK)}, 16384, v7
v_xor_b32 {v(vWV)}, 64, {v(vWK)}""")
a(f"""s_lshl_b32 {s(sUB)}, {s(sE2)}, 1
s_add_u32 {s(sUB)}, {s(sUB)}, {s(sW)}
s_lshl_b32 {s(sUB)}, {s(sUB)}, 13
s_lshl_b32 {s(sA)}, {s(sJP)}, 11
s_add_u32 {s(sUB)}, {s(sUB)}, {s(sA)}
s_lshl_b32 {s(sA)}, {s(sK1)}, 6
s_add_u32 {s(sUB)}, {s(sUB)}, {s(sA)}
s_lshl_b32 {s(sEXT)}, {s(sJP)}, 1
s_add_u32 {s(sEXT)}, {s(sEXT)}, {s(sE2)}
s_cmp_eq_u32 {s(sEXT)}, 7
s_cselect_b32 {s(sEXT)}, 1, 0""")
per_gap = (len(G) + 55) // 56
AK, AV, WF = 4, 20, 36
vT1, vT2 = 2, 3
cur = 0
for c in range(8):
    a.wait_vm(tokC[c])
    a("s_barrier")
    stamp()
    sl = (c % 5) * SLOT
    if sl != cur:
        dlt = (sl - cur) & 0xffffffff
        for r in (vXA, vXA+1, vXA+2, vXA+3, vWK, vWV):
            a(f"v_add_u32 {v(r)}, {dlt}, {v(r)}")
        cur = sl
    def reads(tt):
        a(f"ds_read_b128 {ag(16*c+4*tt,4)}, {v(vXA+tt)}")
        for k, ad in ((0, vWK), (1, vWV)):
            for u in range(2):
                a(f"ds_read_b64_tr_b16 {v(WF+8*tt+4*k+2*u,2)}, {v(ad)} offset:{tt*2048+u*512}")
    reads(0); reads(1); reads(2)
    if 1 <= c <= 3:
        issue_chunk(c + 4)
    if c == 4:
        a(f"""v_lshrrev_b32 {v(vT1)}, 3, {v(vL)}
v_mul_u32_u24 {v(vT1)}, 16448, {v(vT1)}
v_and_b32 {v(vT2)}, 7, {v(vL)}
v_lshl_add_u32 {v(vT1)}, {v(vT2)}, 4, {v(vT1)}
s_mul_i32 {s(sA)}, {s(sK1)}, 514
s_lshl_b32 {s(sB)}, {s(sJP)}, 7
s_add_u32 {s(sA)}, {s(sA)}, {s(sB)}
s_and_b32 {s(sB)}, {s(sW)}, 1
s_mul_i32 {s(sB)}, {s(sB)}, {32*16448}
s_add_u32 {s(sA)}, {s(sA)}, {s(sB)}
s_lshl_b32 {s(sB)}, {s(sW)}, 12
s_add_u32 {s(sB)}, {s(sB)}, {WT}""")
        l1, l2 = a.label("wi"), a.label("wj")
        a(f"s_cmp_ge_u32 {s(sW)}, 2\ns_cbranch_scc1 {l1}")
        dma(vT1, WR, f"s_mov_b32 m0, {s(sB)}", f"s_mov_b32 {s(sSO)}, {s(sA)}", 4, 1024, 8*16448)
        a(f"s_branch {l2}\n{l1}:")
        a.vm = a.vm[:-4]
        dma(vT1, WI, f"s_mov_b32 m0, {s(sB)}", f"s_mov_b32 {s(sSO)}, {s(sA)}", 4, 1024, 8*16448)
        a(f"{l2}:")
    if c == 5:
        a(f"""v_lshrrev_b32 {v(vT1)}, 2, {v(vL)}
v_mul_u32_u24 {v(vT1)}, 3072, {v(vT1)}
v_and_b32 {v(vT2)}, 3, {v(vL)}
v_lshl_add_u32 {v(vT1)}, {v(vT2)}, 4, {v(vT1)}
s_mul_i32 {s(sA)}, {s(sW)}, {128*3072}
s_lshl_b32 {s(sB)}, {s(sHP)}, 6
s_add_u32 {s(sA)}, {s(sA)}, {s(sB)}
s_lshl_b32 {s(sB)}, {s(sW)}, 13
s_add_u32 {s(sB)}, {s(sB)}, {XT}""")
        dma(vT1, WQ, f"s_mov_b32 m0, {s(sB)}", f"s_mov_b32 {s(sSO)}, {s(sA)}", 8, 1024, 16*3072)
        tokWQ = a.tok()
        lx = a.label("noew")
        a(f"""s_lshl_b32 {s(sA)}, {s(sEXT)}, 2
s_add_u32 {s(sA)}, {s(sA)}, {s(sW)}
s_cmp_lg_u32 {s(sA)}, 6
s_cbranch_scc1 {lx}
v_mul_u32_u24 {v(vT1)}, 16448, {v(vL)}
s_mul_i32 {s(sA)}, {s(sK1)}, 514
s_add_u32 {s(sA)}, {s(sA)}, 512
buffer_load_ushort {v(vEW)}, {v(vT1)}, {s(WR,4)}, {s(sA)} offen
buffer_load_ushort {v(vEW+1)}, {v(vT1)}, {s(WI,4)}, {s(sA)} offen
{lx}:""")
        a.vm = a.vm[:-2]
    for tt in range(4):
        if tt == 0:
            a("s_waitcnt lgkmcnt(10)")
        elif tt == 1:
            reads(3)
            a("s_waitcnt lgkmcnt(10)")
        else:
            a(f"s_waitcnt lgkmcnt({5*(3-tt)})")
        first = (c == 0 and tt == 0)
        mfma32(AK, ag(16*c+4*tt,4), v(WF+8*tt,4), "0" if first else v(AK,16))
        if c < 7: fill(per_gap)
        mfma32(AV, ag(16*c+4*tt,4), v(WF+8*tt+4,4), "0" if first else v(AV,16))
        if c < 7: fill(per_gap)
fill(len(G))
stamp()

def phi(acc, dst, t0):
    a(f"s_mov_b32 {s(sA)}, {fl(1.4426950408889634)}\ns_mov_b32 {s(sB)}, {fl(1e-6)}")
    for i in range(16):
        a(f"v_mul_f32 {v(t0+i)}, {s(sA)}, {v(acc+i)}")
    for i in range(16):
        a(f"v_exp_f32 {v(t0+i)}, {v(t0+i)} clamp\nv_max_f32 {v(acc+i)}, 0, {v(acc+i)}")
    for i in range(0, 16, 2):
        a(f"v_add_f32 {v(acc+i)}, {s(sB)}, {v(acc+i)}\nv_add_f32 {v(acc+i+1)}, {s(sB)}, {v(acc+i+1)}")
        a(f"v_pk_add_f32 {v(acc+i,2)}, {v(acc+i,2)}, {v(t0+i,2)}")
        a(cvt(dst + i//2, acc+i, acc+i+1))

phi(AK, 36, 52)
for i in range(8):
    a(cvt(44+i, AV+2*i, AV+2*i+1))
for i in range(4):
    a(f"v_mov_b32 {v(68+i)}, 0x3f803f80")
mfma32(4, v(36,4), v(44,4), "0")
mfma32(20, v(68,4), v(36,4), "0")
mfma32(4, v(40,4), v(48,4), v(4,16))
mfma32(20, v(68,4), v(40,4), v(20,16))
a(f"""s_mov_b32 {s(sMK)}, 0xffff0000
s_mov_b32 {s(sMK+1)}, 0xffff0000
v_and_b32 v52, 15, {v(vL)}
v_lshrrev_b32 v53, 5, {v(vL)}
v_lshl_add_u32 v52, v53, 4, v52
v_lshlrev_b32 v52, 4, v52
v_bfe_u32 v53, {v(vL)}, 4, 1
v_lshl_add_u32 v52, v53, 10, v52
s_lshl_b32 {s(sA)}, {s(sW)}, 11
s_add_u32 {s(sA)}, {s(sA)}, {RED}
v_add_u32 v52, {s(sA)}, v52
v_and_b32 v53, 31, {v(vL)}
s_lshl_b32 {s(sA)}, {s(sW)}, 7
s_add_u32 {s(sA)}, {s(sA)}, {ZR}
v_lshl_add_u32 v53, v53, 2, {s(sA)}
v_lshrrev_b32 v54, 2, {v(vL)}
v_lshlrev_b32 v54, 15, v54
v_bfe_u32 v55, {v(vL)}, 4, 1
v_lshlrev_b32 v55, 1, v55
v_and_b32 v56, 3, {v(vL)}
v_xor_b32 v55, v55, v56
v_lshl_add_u32 v94, v55, 4, v54""")
for i in range(8):
    a(f"v_cndmask_b32 {v(4+i)}, {v(4+i)}, {v(12+i)}, {s(sMK,2)}")
a(f"ds_write_b128 v52, {v(4,4)}\nds_write_b128 v52, {v(8,4)} offset:512\nds_write_b32 v53, v20")
a("s_waitcnt lgkmcnt(0)\ns_barrier")
stamp()
a(f"""s_cmp_eq_u32 {s(sW)}, 3
s_cselect_b32 {s(sHEND)}, 2, 1
s_cselect_b32 {s(sHEAD)}, 1, 0
s_cselect_b32 {s(sA)}, {s(sEXT)}, 0
s_sub_u32 {s(sHEAD)}, {s(sHEAD)}, {s(sA)}
s_cmp_eq_u32 {s(sW)}, 2
s_cselect_b32 {s(sA)}, {s(sEXT)}, 0
s_sub_u32 {s(sHEND)}, {s(sHEND)}, {s(sA)}
s_cmp_lt_u32 {s(sW)}, 2
s_cselect_b32 {s(sHEND)}, 0, {s(sHEND)}""")
lpub, lpube, lpubw, lbq = a.label("pub"), a.label("pube"), a.label("pubw"), a.label("bq")
vXO = 94
def x_issue():
    dma(vXO, WS, f"s_mov_b32 m0, {s(sC)}", f"s_add_u32 {s(sSO)}, {s(sUB)}, {XOFF}", 4, 1024, 16*32768, "sc0 sc1")
a(f"""s_mul_i32 {s(sC)}, {s(sW)}, 5120
s_add_u32 {s(sC)}, {s(sC)}, {XTL}
s_cmp_lt_u32 {s(sW)}, 2
s_cbranch_scc0 {lpubw}""")
x_issue()
a(f"s_waitcnt vmcnt(4)\ns_branch {lbq}\n{lpubw}:")
a(f"""s_mov_b32 {s(sD)}, {s(sHEAD)}
s_cmp_ge_u32 {s(sD)}, {s(sHEND)}
s_cbranch_scc1 {lpube}
{lpub}:
s_lshl_b32 {s(sA)}, {s(sD)}, 10
s_add_u32 {s(sA)}, {s(sA)}, {RED}
v_add_u32 v52, {s(sA)}, {v(vL16)}
s_lshl_b32 {s(sA)}, {s(sD)}, 6
s_add_u32 {s(sA)}, {s(sA)}, {ZR}
v_and_b32 v54, 15, {v(vL)}
v_lshl_add_u32 v53, v54, 2, {s(sA)}""")
for ww in range(4):
    a(f"ds_read_b128 {v(4+4*ww,4)}, v52 offset:{ww*2048}")
for ww in range(4):
    a(f"ds_read_b32 {v(20+ww)}, v53 offset:{ww*128}")
a(f"""s_lshl_b32 {s(sA)}, {s(sHP)}, 1
s_add_u32 {s(sA)}, {s(sA)}, {s(sD)}
s_lshl_b32 {s(sA)}, {s(sA)}, 4
s_add_u32 {s(sA)}, {s(sA)}, {s(sRB)}
s_mul_i32 {s(sA)}, {s(sA)}, {KVREC}
s_add_u32 {s(sA)}, {s(sA)}, {KVOFF}
v_lshlrev_b32 v55, 1, v54
v_lshrrev_b32_e64 v55, v55, {s(sT)}
v_lshlrev_b32 v54, 2, v54
s_waitcnt lgkmcnt(4)
v_pk_add_f32 v[4:5], v[4:5], v[8:9]
v_pk_add_f32 v[6:7], v[6:7], v[10:11]
v_pk_add_f32 v[12:13], v[12:13], v[16:17]
v_pk_add_f32 v[14:15], v[14:15], v[18:19]
v_pk_add_f32 v[4:5], v[4:5], v[12:13]
v_pk_add_f32 v[6:7], v[6:7], v[14:15]""")
for j in range(4):
    a(f"v_bfi_b32 {v(4+j)}, 3, {v(vTO+j)}, {v(4+j)}")
a(f"""buffer_store_dwordx4 v[4:7], {v(vL16)}, {s(WS,4)}, {s(sA)} offen sc0 sc1
s_waitcnt lgkmcnt(0)
v_add_f32 v20, v20, v21
v_add_f32 v22, v22, v23
v_add_f32 v20, v20, v22
v_bfi_b32 v20, 3, v55, v20
s_mov_b64 exec, 0xffff
buffer_store_dword v20, v54, {s(WS,4)}, {s(sA)} offen offset:1024 sc0 sc1
s_mov_b64 exec, -1
s_add_u32 {s(sD)}, {s(sD)}, 1
s_cmp_lt_u32 {s(sD)}, {s(sHEND)}
s_cbranch_scc1 {lpub}
{lpube}:""")
a(f"s_waitcnt vmcnt(2)\n{lbq}:\ns_barrier")
stamp()

def wo_issue(b):
    a(f"""v_lshrrev_b32 {v(vT1)}, 2, {v(vL)}
v_and_b32 {v(vT2)}, 3, {v(vL)}
v_lshlrev_b32 {v(vT2)}, 4, {v(vT2)}
v_lshl_add_u32 {v(vT1)}, {v(vT1)}, 10, {v(vT2)}
s_lshl_b32 {s(sA)}, {s(sCB)}, 8
s_lshl_b32 {s(sB)}, {s(sW)}, 6
s_add_u32 {s(sA)}, {s(sA)}, {s(sB)}
s_add_u32 {s(sA)}, {s(sA)}, {b*256*1024}
s_lshl_b32 {s(sB)}, {s(sW)}, 14
s_add_u32 {s(sB)}, {s(sB)}, {WOS}""")
    dma(vT1, WO, f"s_mov_b32 m0, {s(sB)}", f"s_mov_b32 {s(sSO)}, {s(sA)}", 16, 1024, 16384)
def wo_addr(r, t1):
    a(f"""v_bfe_u32 {v(r)}, {v(vL)}, 2, 2
v_lshrrev_b32 {v(t1)}, 5, {v(vL)}
v_lshl_add_u32 {v(r)}, {v(t1)}, 3, {v(r)}
v_lshlrev_b32 {v(r)}, 6, {v(r)}
v_and_b32 {v(t1)}, 1, {v(vL)}
v_lshl_add_u32 {v(r)}, {v(t1)}, 5, {v(r)}
v_bfe_u32 {v(t1)}, {v(vL)}, 1, 1
v_lshl_add_u32 {v(r)}, {v(t1)}, 3, {v(r)}
v_bfe_u32 {v(t1)}, {v(vL)}, 4, 1
v_lshl_add_u32 {v(r)}, {v(t1)}, 4, {v(r)}
s_lshl_b32 {s(sA)}, {s(sW)}, 14
s_add_u32 {s(sA)}, {s(sA)}, {WOS}
v_add_u32 {v(r)}, {s(sA)}, {v(r)}""")
def wo_read(b, r):
    for tt in range(16):
        for u in range(2):
            a(f"ds_read_b64_tr_b16 {ag(128+64*b+4*tt+2*u,2)}, {v(r)} offset:{tt*1024+u*256}")

lq, lp2x, lp2 = a.label("q"), a.label("p2x"), a.label("p2")
XR, XI, NX, WRr, WIr = 36, 44, 52, 60, 76
vU0, vU1 = 92, 93
a(f"""v_add_u32 {v(vU0)}, {s(sC)}, {v(vTR0)}
v_add_u32 {v(vU1)}, {s(sC)}, {v(vTR1)}
s_mov_b32 {s(sCNT)}, {SPIN_MAX}
s_cmp_lt_u32 {s(sW)}, 2
s_cbranch_scc0 {lp2x}""")
def x_reads():
    for c, ad in ((0, vU0), (1, vU1)):
        for k in range(2):
            for u in range(2):
                a(f"ds_read_b64_tr_b16 {v(XR+8*c+4*k+2*u,2)}, {v(ad)} offset:{k*2048+u*1024}")
a(f"""v_bfe_u32 v5, {v(vL)}, 2, 2
s_lshl_b32 {s(sA)}, {s(sE2)}, 1
s_add_u32 {s(sA)}, {s(sA)}, {s(sW)}
s_lshl_b32 {s(sA)}, {s(sA)}, 2
v_add_u32 v5, {s(sA)}, v5
v_sub_u32 v6, 32, v5
v_cmp_eq_u32 vcc, 0, v5
v_bfe_u32 v7, {v(vL)}, 1, 1
v_cndmask_b32 v6, v6, 16, vcc
v_cmp_eq_u32 vcc, 1, v7
v_and_b32 v7, 1, {v(vL)}
v_cndmask_b32 v5, v5, v6, vcc
v_lshl_add_u32 v5, v7, 5, v5
v_lshlrev_b32 v5, 1, v5
v_lshrrev_b32 v6, 4, {v(vL)}
v_lshl_add_u32 v5, v6, 9, v5
v_add_u32 v5, {WT}, v5""")
for c in range(2):
    for i in range(16):
        a(f"ds_read_u16 {v(WRr+16*c+i)}, v5 offset:{c*8192 + (16*(i>>2) + (i&3))*128}")
a("s_waitcnt lgkmcnt(15)")
for i in range(16):
    a(f"v_lshlrev_b32 {v(WRr+i)}, 16, {v(WRr+i)}")
a("s_waitcnt lgkmcnt(0)")
for i in range(16, 32):
    a(f"v_lshlrev_b32 {v(WRr+i)}, 16, {v(WRr+i)}")
lsp, lrt = a.label("spx"), a.label("rtx")
a(f"s_branch {lsp}\n{lrt}:")
x_issue()
a(f"{lsp}:\ns_waitcnt vmcnt(0)")
x_reads()
a(f"v_mov_b32 v6, 0\ns_waitcnt lgkmcnt(4)")
for i in range(8):
    a(f"v_bitop3_b32 v6, v6, {v(XR+i)}, {v(vTC)} bitop3:0xf6")
a("s_waitcnt lgkmcnt(0)")
for i in range(8):
    a(f"v_bitop3_b32 v6, v6, {v(XI+i)}, {v(vTC+1)} bitop3:0xf6")
spin_tail(lrt, 6, mask_v=vM)
a(f"s_branch {lp2}")
a(f"""{lp2x}:
s_lshl_b32 {s(sA)}, {s(sEXT)}, 2
s_add_u32 {s(sA)}, {s(sA)}, {s(sW)}
s_cmp_lg_u32 {s(sA)}, 6
s_cbranch_scc1 {lq}
v_lshlrev_b32 v4, 8, {v(vL)}
s_lshl_b32 {s(sB)}, {s(sK1)}, 3
s_add_u32 {s(sB)}, {s(sB)}, {XEOFF}""")
lsp = a.label("spe")
a(f"""{lsp}:
buffer_load_dwordx2 v[8:9], v4, {s(WS,4)}, {s(sB)} offen sc0 sc1
s_waitcnt vmcnt(0)
v_xor_b32 v6, {s(sT)}, v9""")
spin_tail(lsp, 6)
a(f"""v_lshlrev_b32 v5, 6, {v(vL)}
v_bfe_u32 v6, {v(vL)}, 2, 1
v_lshl_add_u32 v5, v6, 5, v5
v_add_u32 v5, {s(sC)}, v5
v_xor_b32 v6, 32, v5
ds_write_b16 v5, v8
ds_write_b16_d16_hi v6, v8
v_lshlrev_b32 v10, 16, {v(vEW)}
v_lshlrev_b32 v11, 16, {v(vEW+1)}
v_lshlrev_b32 v7, 2, {v(vL)}
v_add_u32 v7, {WE}, v7
ds_write_b32 v7, v10
ds_write_b32 v7, v11 offset:256
v_and_b32 v7, 48, {v(vL)}
v_add_u32 v7, {WE}, v7
s_waitcnt lgkmcnt(0)""")
for c in range(2):
    for b in range(4):
        a(f"ds_read_b128 {v(WRr+16*c+4*b,4)}, v7 offset:{c*256 + b*64}")
a("s_waitcnt lgkmcnt(0)")
x_reads()
a("s_waitcnt lgkmcnt(0)")
a(f"{lp2}:")
stamp()
wo_issue(0)
for i in range(8):
    a(f"v_xor_b32 {v(NX+i)}, 0x80008000, {v(XR+i)}")
FR, FI = 4, 20
for k in range(2):
    for b in range(4):
        mfma16(FR+4*b, v(PC+8*b+4*k,4), v(XR+4*k,4), "0" if k == 0 else v(FR+4*b,4))
        mfma16(FI+4*b, v(PC+8*b+4*k,4), v(XI+4*k,4), "0" if k == 0 else v(FI+4*b,4))
for b in range(4):
    for k in range(2):
        mfma16(FR+4*b, v(PS+8*b+4*k,4), v(XI+4*k,4), v(FR+4*b,4))
        mfma16(FI+4*b, v(PS+8*b+4*k,4), v(NX+4*k,4), v(FI+4*b,4))
YR, YI, NY = 36, 44, 52
for i in range(0, 16, 2):
    xr, xi, wr, wi = v(FR+i,2), v(FI+i,2), v(WRr+i,2), v(WIr+i,2)
    a(f"""v_pk_mul_f32 v[92:93], {xi}, {wi}
v_pk_mul_f32 v[94:95], {xi}, {wr}
v_pk_fma_f32 {xi}, {xr}, {wi}, v[94:95]
v_pk_fma_f32 {xr}, {xr}, {wr}, v[92:93] neg_lo:[0,0,1] neg_hi:[0,0,1]""")
    a(cvt(YI+i//2, FI+i, FI+i+1)); a(cvt(YR+i//2, FR+i, FR+i+1)); a(cvt(NY+i//2, FI+i, FI+i+1, True, True))
for k in range(2):
    for b in range(4):
        mfma16(FR+4*b, v(YR+4*k,4), v(PC+8*b+4*k,4), "0" if k == 0 else v(FR+4*b,4))
        mfma16(FI+4*b, v(YI+4*k,4), v(PC+8*b+4*k,4), "0" if k == 0 else v(FI+4*b,4))
a(f"""v_lshrrev_b32 v60, 4, {v(vL)}
v_lshlrev_b32 v61, 2, v60
v_lshrrev_b32_e64 v61, v61, {s(sT)}""")
for c in range(2):
    for d in range(2):
        a(f"v_bfe_u32 {v(64+2*c+d)}, v61, {16*c+2*d}, 2\nv_mul_u32_u24 {v(64+2*c+d)}, 0x8001, {v(64+2*c+d)}")
a(f"""v_and_b32 v61, 15, {v(vL)}
v_mul_u32_u24 v61, 80, v61
v_lshl_add_u32 v61, v60, 3, v61
v_add_u32 v61, {s(sC)}, v61
v_add_u32 v62, {s(sC)}, {v(vSTR)}
v_lshrrev_b32 v63, 2, {v(vL)}
v_lshlrev_b32 v63, 15, v63
v_and_b32 v60, 3, {v(vL)}
v_lshl_add_u32 v63, v60, 4, v63""")
for b in range(4):
    for k in range(2):
        mfma16(FR+4*b, v(NY+4*k,4), v(PS+8*b+4*k,4), v(FR+4*b,4))
        mfma16(FI+4*b, v(YR+4*k,4), v(PS+8*b+4*k,4), v(FI+4*b,4))
lxo = a.label("xout")
a(f"s_cmp_eq_u32 {s(sW)}, 2\ns_cbranch_scc1 {lxo}")
for b in range(4):
    for c in range(2):
        r = (FR, FI)[c] + 4*b; d = 68 + 4*b + 2*c
        a(cvt(d, r, r+1)); a(cvt(d+1, r+2, r+3))
        a(f"v_bfi_b32 {v(d)}, {v(vM)}, {v(64+2*c)}, {v(d)}\nv_bfi_b32 {v(d+1)}, {v(vM)}, {v(65+2*c)}, {v(d+1)}")
        a(f"ds_write_b64 v61, {v(d,2)} offset:{b*1280 + c*32}")
a("s_waitcnt lgkmcnt(0)")
for i in range(4):
    a(f"ds_read_b128 {v(36+4*i,4)}, v62 offset:{i*1280}")
a(f"s_add_u32 {s(sSO)}, {s(sUB)}, {XPOFF}")
for i in range(4):
    a(f"s_waitcnt lgkmcnt({3-i})\nbuffer_store_dwordx4 {v(36+4*i,4)}, v63, {s(WS,4)}, {s(sSO)} offen sc0 sc1")
    if i < 3:
        a(f"s_add_u32 {s(sSO)}, {s(sSO)}, {16*32768}")
lq2 = a.label("q2")
a(f"""s_branch {lq2}
{lxo}:
v_lshlrev_b32 v63, 8, {v(vL)}
s_lshl_b32 {s(sSO)}, {s(sK1)}, 3
s_add_u32 {s(sSO)}, {s(sSO)}, {XEPOFF}""")
for b in range(4):
    a(cvt(36+2*b, FR+4*b, FI+4*b)); a(f"v_mov_b32 {v(37+2*b)}, {s(sT)}")
a("s_mov_b64 exec, 0xffff")
for b in range(4):
    a(f"buffer_store_dwordx2 {v(36+2*b,2)}, v63, {s(WS,4)}, {s(sSO)} offen sc0 sc1")
    if b < 3:
        a(f"s_add_u32 {s(sSO)}, {s(sSO)}, 4096")
a(f"s_mov_b64 exec, -1\ns_branch {lq2}\n{lq}:")
wo_issue(0)
a(f"{lq2}:")
stamp()

a(f"""v_bfe_u32 v2, {v(vL)}, 2, 2
v_lshrrev_b32 v3, 5, {v(vL)}
v_lshl_add_u32 v2, v3, 3, v2
v_lshlrev_b32 v2, 6, v2
v_bfe_u32 v3, {v(vL)}, 4, 1
v_lshl_add_u32 v2, v3, 5, v2
v_and_b32 v3, 3, {v(vL)}
v_lshl_add_u32 v2, v3, 3, v2
v_add_u32 v2, {XT}, v2""")
DEPTH = 6
def qread(tt):
    for u in range(2):
        a(f"ds_read_b64_tr_b16 {v(36+4*(tt%8)+2*u,2)}, v2 offset:{tt*1024+u*256}")
for tt in range(DEPTH):
    qread(tt)
for tt in range(32):
    if tt + DEPTH < 32:
        qread(tt + DEPTH)
    a(f"s_waitcnt lgkmcnt({2*min(DEPTH, 31-tt)})")
    mfma32(4, v(36+4*(tt%8),4), ag(4*tt,4), "0" if tt == 0 else v(4,16))
wo_addr(94, 95)
phi(4, 20, 36)
a("s_waitcnt vmcnt(0)")
wo_read(0, 94)
stamp()

lg, lge = a.label("g"), a.label("ge")
a(f"""s_mov_b32 {s(sD)}, {s(sHEAD)}
s_cmp_ge_u32 {s(sD)}, {s(sHEND)}
s_cbranch_scc1 {lge}
{lg}:
s_lshl_b32 {s(sC)}, {s(sHP)}, 1
s_add_u32 {s(sC)}, {s(sC)}, {s(sD)}
s_mul_i32 {s(sC)}, {s(sC)}, {16*KVREC}
s_add_u32 {s(sC)}, {s(sC)}, {KVOFF}
v_lshrrev_b32 v2, 4, {v(vL)}
v_mul_u32_u24 v2, {KVREC}, v2
v_and_b32 v3, 15, {v(vL)}
v_lshl_add_u32 v2, v3, 2, v2
v_lshlrev_b32 v3, 1, v3
v_lshrrev_b32_e64 v3, v3, {s(sT)}
s_mov_b32 {s(sCNT)}, {SPIN_MAX}""")
lsp = a.label("spg")
a(f"{lsp}:\ns_mov_b32 {s(sSO)}, {s(sC)}")
for p in range(16):
    a(f"buffer_load_dwordx4 {v(28+4*p,4)}, {v(vL16)}, {s(WS,4)}, {s(sSO)} offen sc0 sc1")
    if p % 4 == 0:
        a(f"buffer_load_dword {v(4+p//4)}, v2, {s(WS,4)}, {s(sSO)} offen offset:1024 sc0 sc1")
    if p < 15:
        a(f"s_add_u32 {s(sSO)}, {s(sSO)}, {KVREC}")
a("v_mov_b32 v8, 0")
for p in range(16):
    rem = (15 - p) + sum(1 for q in range(p + 1, 16) if q % 4 == 0) + (1 if p % 4 == 0 else 0)
    a(f"s_waitcnt vmcnt({rem})")
    for j in range(4):
        a(f"v_bitop3_b32 v8, v8, {v(28+4*p+j)}, {v(vTO+j)} bitop3:0xf6")
    if p > 0:
        a(f"v_pk_add_f32 v[28:29], v[28:29], {v(28+4*p,2)}\nv_pk_add_f32 v[30:31], v[30:31], {v(30+4*p,2)}")
for j in range(4):
    a(f"v_bitop3_b32 v8, v8, {v(4+j)}, v3 bitop3:0xf6")
spin_tail(lsp, 8, mask_imm=3)
a(f"""v_add_f32 v4, v4, v5
v_add_f32 v6, v6, v7
v_add_f32 v4, v4, v6
{cvt(28, 28, 29)}
{cvt(29, 30, 31)}
v_mov_b32 v5, v4
s_mul_i32 {s(sA)}, {s(sD)}, 544
s_add_u32 {s(sA)}, {s(sA)}, {IMG}
v_permlane16_swap_b32 v4, v5
v_and_b32 v9, 15, {v(vL)}
v_lshlrev_b32 v9, 5, v9
v_add_f32 v4, v4, v5
v_bfe_u32 v10, {v(vL)}, 4, 1
v_lshl_add_u32 v9, v10, 4, v9
v_mov_b32 v5, v4
v_lshrrev_b32 v10, 5, {v(vL)}
v_lshl_add_u32 v9, v10, 3, v9
v_permlane32_swap_b32 v4, v5
v_add_u32 v9, {s(sA)}, v9
ds_write_b64 v9, v[28:29]
v_add_f32 v4, v4, v5
v_bfe_u32 v10, {v(vL)}, 2, 1
v_lshlrev_b32 v10, 4, v10
v_bfe_u32 v11, {v(vL)}, 3, 1
v_lshl_add_u32 v10, v11, 3, v10
v_and_b32 v11, 3, {v(vL)}
v_lshl_add_u32 v10, v11, 1, v10
v_add_u32 v10, {s(sA)}, v10
{cvt(4, 4, 4)}
ds_write_b16 v10, v4 offset:512
s_add_u32 {s(sD)}, {s(sD)}, 1
s_cmp_lt_u32 {s(sD)}, {s(sHEND)}
s_cbranch_scc1 {lg}
{lge}:""")
a(f"""v_bfe_u32 v2, {v(vL)}, 2, 1
v_lshlrev_b32 v2, 3, v2
v_bfe_u32 v3, {v(vL)}, 3, 1
v_lshl_add_u32 v2, v3, 2, v2
v_and_b32 v3, 3, {v(vL)}
v_add_u32 v2, v2, v3
v_lshlrev_b32 v2, 5, v2
v_bfe_u32 v3, {v(vL)}, 4, 1
v_cmp_eq_u32 vcc, 1, v3
v_lshrrev_b32 v3, 5, {v(vL)}
v_mov_b32 v28, 512
v_cndmask_b32 v2, v2, v28, vcc
v_lshl_add_u32 v2, v3, 4, v2
v_add_u32 v2, {IMG}, v2
s_waitcnt lgkmcnt(0)
s_barrier""")
stamp()
a(f"ds_read_b128 v[28:31], v2\nds_read_b128 v[32:35], v2 offset:544")
a(f"""s_lshl_b32 {s(sC)}, {s(sRB)}, 2
s_add_u32 {s(sC)}, {s(sC)}, {s(sW)}
s_lshl_b32 {s(sC)}, {s(sC)}, 4
s_add_u32 {s(sC)}, {s(sC)}, {s(sHP)}
s_lshl_b32 {s(sC)}, {s(sC)}, 11
s_add_u32 {s(sC)}, {s(sC)}, {OOFF}
s_mov_b32 {s(sB)}, {fl(1e-6)}
s_waitcnt lgkmcnt(1)""")
mfma32(36, v(28,4), v(20,4), "0")
a("s_waitcnt lgkmcnt(0)")
mfma32(52, v(32,4), v(24,4), "0")
for m in range(2):
    d = 36 + 16*m
    a(f"v_add_f32 {v(d+8)}, {s(sB)}, {v(d+8)}\nv_rcp_f32 {v(d+8)}, {v(d+8)}")
    for i in range(0, 8, 2):
        a(f"v_pk_mul_f32 {v(d+i,2)}, {v(d+i,2)}, {v(d+8,2)} op_sel_hi:[1,0]")
    for j in range(4):
        a(cvt(4+4*m+j, d+2*j, d+2*j+1))
        a(f"v_bfi_b32 {v(4+4*m+j)}, {v(vM)}, {v(vTO+j)}, {v(4+4*m+j)}")
    a(f"buffer_store_dwordx4 {v(4+4*m,4)}, {v(vL16)}, {s(WS,4)}, {s(sC)} offen offset:{1024*m} sc0 sc1")
stamp()
wo_issue(1)

a(f"""s_lshl_b32 {s(sC)}, {s(sW)}, 13
s_add_u32 {s(sC)}, {s(sC)}, {XT}
v_add_u32 {v(vU0)}, {s(sC)}, {v(vTR0)}
v_add_u32 {v(vU1)}, {s(sC)}, {v(vTR1)}
v_lshrrev_b32 v2, 2, {v(vL)}
v_lshlrev_b32 v2, 6, v2
v_bfe_u32 v3, {v(vL)}, 4, 1
v_lshlrev_b32 v3, 1, v3
v_and_b32 v12, 3, {v(vL)}
v_xor_b32 v3, v3, v12
v_lshl_add_u32 v2, v3, 4, v2
s_lshl_b32 {s(sD)}, {s(sSG)}, 15
s_lshl_b32 {s(sA)}, {s(sW)}, 13
s_add_u32 {s(sD)}, {s(sD)}, {s(sA)}
s_add_u32 {s(sD)}, {s(sD)}, {XPOFF}
s_mov_b32 {s(sCNT)}, {SPIN_MAX}""")
lsp = a.label("spp")
a(f"{lsp}:")
dma(2, WS, f"s_mov_b32 m0, {s(sC)}", f"s_mov_b32 {s(sSO)}, {s(sD)}", 8, 1024, 1024, "sc0 sc1")
a("s_waitcnt vmcnt(0)")
for jp in range(4):
    for c, ad in ((0, vU0), (1, vU1)):
        for u in range(2):
            a(f"ds_read_b64_tr_b16 {v(36+8*jp+4*c+2*u,2)}, {v(ad)} offset:{jp*2048+u*1024}")
a("v_mov_b32 v12, 0")
for jp in range(4):
    a(f"s_waitcnt lgkmcnt({12-4*jp})")
    mfma16(4+4*jp if False else 68+4*jp, v(36+8*jp,4), v(H3,4), "0")
    mfma16(68+4*jp, v(40+8*jp,4), v(H3+4,4), v(68+4*jp,4))
    for i in range(8):
        a(f"v_bitop3_b32 v12, v12, {v(36+8*jp+i)}, {v(vTC + i//4)} bitop3:0xf6")
spin_tail(lsp, 12, mask_v=vM)
stamp()
a(f"""s_lshl_b32 {s(sA)}, {s(sW)}, 2
v_lshrrev_b32 v2, 4, {v(vL)}
v_add_u32 v2, {s(sA)}, v2
v_sub_u32 v3, 32, v2
v_cmp_eq_u32 vcc, 0, v2
v_and_b32 v12, 7, {v(vL)}
v_mul_u32_u24 v12, 1040, v12
v_cndmask_b32 v3, v3, 16, vcc
v_bfe_u32 v13, {v(vL)}, 3, 1
v_lshl_add_u32 v12, v13, 9, v12
v_add_u32 v12, {E3}, v12
v_lshl_add_u32 v2, v2, 4, v12
v_lshl_add_u32 v3, v3, 4, v12""")
for jp in range(4):
    a(cvt(4+jp, 68+4*jp, 69+4*jp)); a(cvt(8+jp, 70+4*jp, 71+4*jp))
a("ds_write_b128 v2, v[4:7]\nds_write_b128 v3, v[8:11]")
lnx = a.label("nox3")
a(f"""s_cmp_lg_u32 {s(sW)}, 0
s_cbranch_scc1 {lnx}
v_and_b32 v14, 31, {v(vL)}
v_lshlrev_b32 v15, 3, v14
s_lshl_b32 {s(sB)}, {s(sSG)}, 8
s_add_u32 {s(sB)}, {s(sB)}, {XEPOFF}
s_mov_b32 {s(sCNT)}, {SPIN_MAX}""")
lsp = a.label("spz")
a(f"""{lsp}:
buffer_load_dwordx2 v[16:17], v15, {s(WS,4)}, {s(sB)} offen sc0 sc1
s_waitcnt vmcnt(0)
v_xor_b32 v18, {s(sT)}, v17""")
spin_tail(lsp, 18)
a(f"""v_lshlrev_b32 v15, 6, v14
v_bfe_u32 v18, v14, 2, 1
v_lshl_add_u32 v15, v18, 5, v15
v_add_u32 v15, {XET}, v15
v_xor_b32 v18, 32, v15
ds_write_b16 v15, v16
ds_write_b16_d16_hi v18, v16
v_add_u32 v15, {XET}, {v(vTR0)}
v_add_u32 v18, {XET}, {v(vTR1)}
s_waitcnt lgkmcnt(0)
ds_read_b64_tr_b16 v[20:21], v15
ds_read_b64_tr_b16 v[22:23], v15 offset:1024
ds_read_b64_tr_b16 v[24:25], v18
ds_read_b64_tr_b16 v[26:27], v18 offset:1024
v_lshlrev_b32 v15, 2, {v(vL)}
v_add_u32 v15, {Z256}, v15
s_waitcnt lgkmcnt(0)""")
mfma16(28, v(20,4), v(H3,4), "0")
mfma16(28, v(24,4), v(H3+4,4), v(28,4))
a(f"s_mov_b64 exec, 0xff\nds_write_b32 v15, v28\ns_mov_b64 exec, -1\n{lnx}:")
a(f"""s_mul_i32 {s(sA)}, {s(sW)}, 2080
s_add_u32 {s(sA)}, {s(sA)}, {E3}
v_add_u32 v2, {s(sA)}, {v(vL16)}
v_lshrrev_b32 v3, 5, {v(vL)}
s_lshl_b32 {s(sA)}, {s(sW)}, 3
s_add_u32 {s(sA)}, {s(sA)}, {Z256}
v_lshl_add_u32 v12, v3, 2, {s(sA)}
s_waitcnt lgkmcnt(0)
s_barrier
ds_read_b128 v[4:7], v2
ds_read_b128 v[8:11], v2 offset:1040
ds_read_b32 v13, v12
s_waitcnt lgkmcnt(2)""")
UR, UI, YA = 36, 52, 68
mfma32(UR, v(4,4), v(B2,4), "0")
mfma32(UI, v(4,4), v(B2+8,4), "0")
a("s_waitcnt lgkmcnt(1)")
mfma32(UR, v(8,4), v(B2+4,4), v(UR,16))
mfma32(UI, v(8,4), v(B2+12,4), v(UI,16))
a("s_waitcnt lgkmcnt(0)\nv_xor_b32 v14, 0x80000000, v13")
for i in range(16):
    a(f"v_mov_b32 {v(YA+i)}, {v(14 if i & 1 else 13)}")
a(f"""s_lshl_b32 {s(sA)}, {s(sQ)}, 2
s_add_u32 {s(sA)}, {s(sA)}, {s(sW)}
s_lshl_b32 {s(sA)}, {s(sA)}, 7
s_add_u32 {s(sA)}, {s(sA)}, {s(sSG)}
s_lshl_b32 {s(sC)}, {s(sA)}, 11
v_lshlrev_b32 v3, 17, v3
v_and_b32 v12, 31, {v(vL)}
v_lshl_add_u32 v3, v12, 5, v3""")
for i in range(0, 16, 2):
    ur, ui, tr, ti = v(UR+i,2), v(UI+i,2), v(TW+i,2), v(TW+16+i,2)
    a(f"""v_pk_mul_f32 v[92:93], {ui}, {ti}
v_pk_mul_f32 v[94:95], {ui}, {tr}
v_pk_fma_f32 {ui}, {ur}, {ti}, v[94:95]
v_pk_fma_f32 {ur}, {ur}, {tr}, v[92:93] neg_lo:[0,0,1] neg_hi:[0,0,1]""")
    a(cvt(20+i//2, UI+i, UI+i+1)); a(cvt(4+i//2, UR+i, UR+i+1))
mfma32(YA, v(4,4), v(B3,4), v(YA,16))
mfma32(YA, v(20,4), v(B3+8,4), v(YA,16))
mfma32(YA, v(8,4), v(B3+4,4), v(YA,16))
mfma32(YA, v(24,4), v(B3+12,4), v(YA,16))
wo_addr(94, 95)
a("s_waitcnt vmcnt(0)")
wo_read(1, 94)
for i in range(8):
    a(cvt(28+i, YA+2*i, YA+2*i+1))
a(f"buffer_store_dwordx4 v[28:31], v3, {s(OU,4)}, {s(sC)} offen\nbuffer_store_dwordx4 v[32:35], v3, {s(OU,4)}, {s(sC)} offen offset:16")
stamp()

a(f"""s_lshl_b32 {s(sD)}, {s(sRB32)}, 2
s_add_u32 {s(sD)}, {s(sD)}, {s(sW)}
s_lshl_b32 {s(sD)}, {s(sD)}, 13
s_add_u32 {s(sD)}, {s(sD)}, {OOFF}
s_add_u32 {s(sC)}, {s(sD)}, 4096
s_lshl_b32 {s(sA)}, {s(sW)}, 13
s_add_u32 {s(sA)}, {s(sA)}, {OT}
v_add_u32 v2, {s(sA)}, {v(vL16)}
v_add_u32 v3, {OT}, {v(vL16)}
s_mov_b32 {s(sCNT)}, {SPIN_MAX}""")
lsp = a.label("spo")
a(f"{lsp}:")
for i in range(8):
    a(f"buffer_load_dwordx4 {v(36+4*i,4)}, {v(vL16)}, {s(WS,4)}, {s(sD if i < 4 else sC)} offen offset:{(i%4)*1024} sc0 sc1")
a("v_mov_b32 v12, 0")
for i in range(8):
    a(f"s_waitcnt vmcnt({7-i})")
    a(f"ds_write_b128 v2, {v(36+4*i,4)} offset:{i*1024}")
    for j in range(4):
        a(f"v_bitop3_b32 v12, v12, {v(36+4*i+j)}, {v(vTO+j)} bitop3:0xf6")
spin_tail(lsp, 12, mask_v=vM)
a("s_waitcnt lgkmcnt(0)\ns_barrier")
stamp()
FD = 6
def oread(tt):
    a(f"ds_read_b128 {v(36+4*(tt%8),4)}, v3 offset:{tt*1024}")
for tt in range(FD):
    oread(tt)
for tt in range(32):
    if tt + FD < 32:
        oread(tt + FD)
    a(f"s_waitcnt lgkmcnt({min(FD, 31-tt)})")
    mfma32(4, ag(128+4*tt,4), v(36+4*(tt%8),4), "0" if tt == 0 else v(4,16))
    if tt == 0:
        a(f"""s_mul_i32 {s(sA)}, {s(sW)}, 2560
s_add_u32 {s(sA)}, {s(sA)}, {FST}
v_and_b32 v28, 31, {v(vL)}
v_mul_u32_u24 v28, 80, v28
v_lshrrev_b32 v29, 5, {v(vL)}
v_lshl_add_u32 v28, v29, 5, v28
v_add_u32 v28, {s(sA)}, v28
v_add_u32 v29, {s(sA)}, {v(vSTR)}
v_lshrrev_b32 v30, 2, {v(vL)}
v_lshlrev_b32 v30, 11, v30
v_and_b32 v31, 3, {v(vL)}
v_lshl_add_u32 v30, v31, 4, v30
s_lshl_b32 {s(sC)}, {s(sRB32)}, 16
s_lshl_b32 {s(sA)}, {s(sCB)}, 8
s_add_u32 {s(sC)}, {s(sC)}, {s(sA)}
s_lshl_b32 {s(sA)}, {s(sW)}, 6
s_add_u32 {s(sC)}, {s(sC)}, {s(sA)}
s_add_u32 {s(sC)}, {s(sC)}, 1024
s_add_u32 {s(sD)}, {s(sC)}, 32768""")
for i in range(8):
    a(cvt(20+i, 4+2*i, 5+2*i))
a(f"""ds_write_b128 v28, v[20:23]
ds_write_b128 v28, v[24:27] offset:16
s_waitcnt lgkmcnt(0)
ds_read_b128 v[36:39], v29
ds_read_b128 v[40:43], v29 offset:1280
s_waitcnt lgkmcnt(1)
buffer_store_dwordx4 v[36:39], v30, {s(OU,4)}, {s(sC)} offen
s_waitcnt lgkmcnt(0)
buffer_store_dwordx4 v[40:43], v30, {s(OU,4)}, {s(sD)} offen""")
lne = a.label("noe")
a(f"""s_add_u32 {s(sA)}, s2, {s(sW)}
s_cmp_lg_u32 {s(sA)}, 0
s_cbranch_scc1 {lne}
v_mov_b32 v2, {s(sE)}
v_mov_b32 v3, {EOFF}
s_mov_b64 exec, 1
buffer_store_dword v2, v3, {s(WS,4)}, 0 offen
s_mov_b64 exec, -1
{lne}:""")
if STAMPS:
    stamp()
    a("s_waitcnt vmcnt(0)")
    stamp()
    a(f"""s_lshl_b32 {s(sA)}, s2, 2
s_add_u32 {s(sA)}, {s(sA)}, {s(sW)}
s_lshl_b32 {s(sA)}, {s(sA)}, 8
s_add_u32 {s(sA)}, {s(sA)}, {STOFF}
v_lshlrev_b32 v2, 2, {v(vL)}
buffer_store_dword {v(vSTP)}, v2, {s(WS,4)}, {s(sA)} offen""")
if PROBE:
    stamp()
    a("s_waitcnt vmcnt(0)")
    stamp()
    a(f"""s_cmp_lg_u32 s2, {PROBE[0]}
s_cbranch_scc1 L_end
s_cmp_lg_u32 {s(sW)}, 1
s_cbranch_scc1 L_end
s_sub_u32 s96, s98, s96
s_mul_i32 s96, s96, 20
s_min_u32 s96, s96, 200000
s_memrealtime s[98:99]
s_waitcnt lgkmcnt(0)
L_probe:
s_memrealtime s[100:101]
s_waitcnt lgkmcnt(0)
s_sub_u32 s100, s100, s98
s_cmp_lt_u32 s100, s96
s_cbranch_scc1 L_probe""")
a("L_end:\ns_endpgm")

head = open("concat_heads__spectral_gfnet__linear_attn_block__prompt.s.ref").read().split("; Override launch")[0]
txt = head + f"""; @launch grid=(256,1,1) block=(256,1,1) lds={LDS_BYTES}
.amdgcn_target "amdgcn-amd-amdhsa--gfx950"
.text
.globl {KNAME}
.p2align 8
.type {KNAME},@function
""" + a.finish() + f"""
.section .rodata,"a"
.p2align 6
.amdhsa_kernel {KNAME}
  .amdhsa_next_free_vgpr 512
  .amdhsa_next_free_sgpr 102
  .amdhsa_accum_offset 256
  .amdhsa_group_segment_fixed_size 0
  .amdhsa_kernarg_size 72
  .amdhsa_user_sgpr_count 2
  .amdhsa_user_sgpr_kernarg_segment_ptr 1
  .amdhsa_system_sgpr_workgroup_id_x 1
.end_amdhsa_kernel
"""
open(OUT, "w").write(txt)
print("wrote", OUT, "G ops", len(G), "per gap", per_gap, "stamps", nstamp[0])
```
